```python
import torch

def _softmax(x, axis=-1):
    return torch.softmax(x, dim=axis)
def _gelu(x):
    return torch.nn.functional.gelu(x, approximate="tanh")
def _silu(x):
    return torch.nn.functional.silu(x)
def _sigmoid(x):
    return torch.sigmoid(x)
def _layernorm(x, axis=-1, eps=1e-5):
    m = x.mean(dim=axis, keepdim=True)
    v = x.var(dim=axis, keepdim=True, unbiased=False)
    return (x - m) / torch.sqrt(v + eps)
def _scatter_add(tgt, idx, src, axis=0):
    return tgt.clone().index_add_(axis, idx, src)
def _segment_sum(src, seg, n):
    out = torch.zeros((n,) + src.shape[1:], dtype=src.dtype)
    return out.index_add_(0, seg, src)
def _pad(x, pw):
    flat = tuple(v for pair in reversed(pw) for v in pair)
    return torch.nn.functional.pad(x, flat)

kernel_name = 'recurrent_scan__linear_kernel_hedgehog__glu_gated_geglu__prompt'

def setup_inputs():

    _w = (lambda a: (lambda t: t.to(torch.bfloat16) if t.is_floating_point() else t)(torch.as_tensor(a)))
    def _A_setup():
        B, S, D, H = 1, 2048, 1024, 32
        Dh = D // H
        return {
            "x": _w((lambda *s: torch.randn(*s, dtype=torch.bfloat16) * 0.05)(B, S, D)),
            "wqkv": _w((lambda *s: torch.randn(*s, dtype=torch.bfloat16) * 0.8)(D, 3 * D)),
            "w_phi": _w((lambda *s: torch.randn(*s, dtype=torch.bfloat16) * 0.8)(H, Dh, Dh) * (Dh ** -0.5)),
            "wo": _w((lambda *s: torch.randn(*s, dtype=torch.bfloat16) * 0.8)(D, D)),
        }
    _A_in = _A_setup()

    def _B_setup():
        B, S, Dm, Df = 1, 2048, 1024, 3584
        return {
            "x": _w((lambda *s: torch.randn(*s, dtype=torch.bfloat16) * 0.05)(B, S, Dm)),
            "w_gate": _w((lambda *s: torch.randn(*s, dtype=torch.bfloat16) * 0.2)(Dm, Df) * (Dm ** -0.5)),
            "w_up": _w((lambda *s: torch.randn(*s, dtype=torch.bfloat16) * 0.2)(Dm, Df) * (Dm ** -0.5)),
            "w_down": _w((lambda *s: torch.randn(*s, dtype=torch.bfloat16) * 0.2)(Df, Dm) * (Df ** -0.5)),
        }
    _B_in = _B_setup()

    return {
        "A_x": _A_in["x"],
        "A_wqkv": _A_in["wqkv"],
        "A_w_phi": _A_in["w_phi"],
        "A_wo": _A_in["wo"],
        "B_x": _B_in["x"],
        "B_w_gate": _B_in["w_gate"],
        "B_w_up": _B_in["w_up"],
        "B_w_down": _B_in["w_down"],
    }

def reference(A_x, A_wqkv, A_w_phi, A_wo, B_x, B_w_gate, B_w_up, B_w_down):
    def _A_ref(x, wqkv, w_phi, wo):
        B, S, D = x.shape
        H = 32; Dh = D // H
        qkv = (lambda x, *d: x.permute(*d))((x @ wqkv).reshape(B, S, 3, H, Dh), 2, 0, 3, 1, 4)
        q, k, v = qkv[0], qkv[1], qkv[2]
        pq = torch.einsum("bhsd,hdf->bhsf", q, w_phi)
        pk = torch.einsum("bhsd,hdf->bhsf", k, w_phi)
        phi_q = torch.concatenate([_softmax(pq, axis=-1), _softmax(-pq, axis=-1)], axis=-1)
        phi_k = torch.concatenate([_softmax(pk, axis=-1), _softmax(-pk, axis=-1)], axis=-1)
        kv = torch.einsum("bhsf,bhsd->bhfd", phi_k, v)
        z  = torch.einsum("bhsf->bhf", phi_k)
        num = torch.einsum("bhqf,bhfd->bhqd", phi_q, kv)
        den = torch.einsum("bhqf,bhf->bhq", phi_q, z)[..., None] + 1e-6
        o = num / den
        return (lambda x, *d: x.permute(*d))(o, 0, 2, 1, 3).reshape(B, S, D) @ wo

    def _B_ref(x, w_gate, w_up, w_down):
        g = torch.einsum("bsd,df->bsf", x, w_gate)
        u = torch.einsum("bsd,df->bsf", x, w_up)
        h = _gelu(g) * u
        return torch.einsum("bsf,fd->bsd", h, w_down)

    x = A_x
    xn = _layernorm(x, axis=-1)
    s = _A_ref(xn, A_wqkv, A_w_phi, A_wo)
    g = _silu(_B_ref(xn, B_w_gate, B_w_up, B_w_down))
    return x + s * g
```

```python
import re

TRANS = ('v_exp_f32', 'v_log_f32', 'v_rcp_f32', 'v_rsq_f32', 'v_sqrt_f32', 'v_sin_f32', 'v_cos_f32', 'v_rcp_iflag_f32')
REG = re.compile(r'^-?(?:abs\()?([vas])(?:\[(\d+):(\d+)\]|(\d+))\)?$')


def regs(tok):
    tok = tok.strip()
    if tok in ('vcc', 'exec', 'm0'):
        return {(tok, 0)}
    m = REG.match(tok)
    if not m:
        return set()
    f = m.group(1)
    if m.group(4) is not None:
        return {(f, int(m.group(4)))}
    return {(f, r) for r in range(int(m.group(2)), int(m.group(3)) + 1)}


class Ins:
    def __init__(self, text):
        self.text = text
        t = text.split(';')[0].strip()
        self.label = t.endswith(':') or t.startswith('.') or not t
        self.op = ''
        self.rd = set(); self.wr = set(); self.srcc = set(); self.srcab = set(); self.data = set()
        self.states = 0
        if self.label:
            return
        parts = t.split(None, 1)
        op = self.op = parts[0]
        rest = parts[1] if len(parts) > 1 else ''
        ops = []
        for n, piece in enumerate(rest.split(',')):
            w = piece.strip().split()
            if w:
                ops.append(w[0])
        self.mods = rest
        self.states = 1
        R = [regs(o) for o in ops]
        allr = set().union(*R) if R else set()
        self.mfma = op.startswith('v_mfma')
        self.valu = op.startswith('v_') and not self.mfma
        self.trans = any(op.startswith(x) for x in TRANS)
        self.vmem = op.startswith(('buffer_', 'global_'))
        self.ds = op.startswith('ds_')
        self.salu = op.startswith('s_')
        self.dpp = '_dpp' in op or 'row_' in rest or 'quad_perm' in rest
        self.perm = op.startswith('v_permlane')
        self.lane = op.startswith(('v_readlane', 'v_readfirstlane'))
        self.ldsdma = self.vmem and (re.search(r'\blds\b', rest) is not None or 'load_lds' in op)
        if op == 's_nop':
            self.states = int(ops[0], 0) + 1
        elif self.mfma:
            self.wr = R[0]; self.srcab = R[1] | R[2]; self.srcc = R[3]; self.rd = self.srcab | self.srcc
            self.passes = 4 if '16x16x32' in op else 8
        elif self.valu:
            if self.perm or op.startswith('v_swap'):
                self.wr = allr; self.rd = allr
            elif op.startswith(('v_add_co', 'v_sub_co', 'v_addc_co', 'v_subb_co')):
                self.wr = R[0] | R[1]; self.rd = set().union(*R[2:])
            else:
                self.wr = R[0]; self.rd = set().union(*R[1:]) if len(R) > 1 else set()
                if op.startswith(('v_fmac', 'v_dot2c', 'v_writelane')) or self.dpp or 'UNUSED_PRESERVE' in rest:
                    self.rd |= R[0]
        elif self.ds:
            if op.startswith(('ds_read', 'ds_bpermute', 'ds_permute', 'ds_swizzle')):
                self.wr = R[0]; self.rd = set().union(*R[1:])
            else:
                self.rd = allr
        elif self.vmem:
            if self.ldsdma:
                self.rd = allr | {('m0', 0)}
            elif '_load' in op:
                self.wr = R[0]; self.rd = set().union(*R[1:])
            elif op.startswith(('buffer_wbl2', 'buffer_inv')):
                pass
            else:
                self.rd = allr
                d = R[0] if op.startswith('buffer_') else R[1]
                if 'x4' in op or 'x3' in op:
                    self.data = d
                if 'atomic' in op and re.search(r'\bsc0\b', rest):
                    self.wr = R[0]
        elif self.salu:
            if op.startswith(('s_cmp', 's_cbranch', 's_branch', 's_waitcnt', 's_barrier', 's_endpgm', 's_setprio', 's_sleep', 's_bitcmp')):
                self.rd = allr
            elif R:
                self.wr = R[0]; self.rd = set().union(*R[1:]) if len(R) > 1 else set()
                if 'saveexec' in op:
                    self.wr |= {('exec', 0)}


def vec(s):
    return {r for r in s if r[0] in 'va' and len(r[0]) == 1}


def sca(s):
    return {r for r in s if r[0] in ('s', 'vcc')}


def need(p, c):
    n = 0
    if p.valu:
        w = vec(p.wr)
        if c.mfma and w & c.rd: n = max(n, 2)
        if (c.perm or c.dpp) and c.valu and w & c.rd: n = max(n, 2)
        if c.valu and c.lane and w & c.rd: n = max(n, 1)
        if p.trans and c.valu and w & c.rd: n = max(n, 1)
        if ('sdwa' in p.op or ('op_sel:' in p.mods and not p.op.startswith('v_pk_'))) and c.valu and w & (c.rd | c.wr): n = max(n, 1)
        sw = sca(p.wr)
        if sw:
            if c.valu and sw & c.rd: n = max(n, 4 if c.op.startswith(('v_readlane', 'v_writelane')) else 2)
            if c.vmem and sw & c.rd: n = max(n, 5)
            if c.salu and sw & c.rd: n = max(n, 1)
    if p.mfma:
        big = {4: 8, 8: 12}[p.passes]; ovl = {4: 6, 8: 10}[p.passes]; war = {4: 3, 8: 7}[p.passes]
        if c.mfma:
            if p.wr & c.srcab: n = max(n, big)
            if p.wr & c.srcc and not (p.wr == c.srcc and p.passes == c.passes): n = max(n, ovl)
            if p.wr & c.wr and not (p.wr == c.srcc): n = max(n, ovl)
        elif (c.valu or c.vmem or c.ds) and p.wr & (c.rd | c.wr): n = max(n, big)
        if c.valu and p.srcc & c.wr: n = max(n, war)
    if p.salu and ('m0', 0) in p.wr and c.ldsdma: n = max(n, 1)
    if p.vmem and p.data and p.data & c.wr: n = max(n, 2 if c.valu else 1)
    return n


def pad_hazards(lines):
    ins = [Ins(l) for l in lines]
    out = []
    def dist_need(hist, c):
        d = 0; worst = 0
        for p in reversed(hist):
            if p.label: continue
            if d >= 12: break
            worst = max(worst, need(p, c) - d)
            d += p.states
        return worst
    for c in ins:
        if not c.label:
            k = dist_need(out[-40:], c)
            if k > 0:
                out.append(Ins(f's_nop {k - 1}'))
        out.append(c)
    labels = {x.text.strip()[:-1]: n for n, x in enumerate(out) if x.label and x.text.strip().endswith(':')}
    for n, x in enumerate(out):
        if x.op.startswith(('s_cbranch', 's_branch')):
            tgt = x.text.split()[1]
            if tgt in labels:
                hist = list(out[max(0, n - 40):n + 1])
                for c in out[labels[tgt]:labels[tgt] + 16]:
                    if c.label: continue
                    assert dist_need(hist, c) <= 0, f'hazard across branch {x.text} -> {c.text}'
                    hist.append(c)
                    if c.op in ('s_endpgm', 's_branch'): break
    return [x.text for x in out]


class Asm:
    def __init__(self):
        self.L = []

    def __call__(self, s):
        for l in s.split('\n'):
            l = l.strip()
            if l: self.L.append(l)

    def ext(self, lines):
        for l in lines: self(l)


def vr(f, b, n=1):
    return f'{f}{b}' if n == 1 else f'{f}[{b}:{b + n - 1}]'


def kernel_header(name):
    return ['.text', f'.globl {name}', '.p2align 8', f'.type {name},@function', f'{name}:']


def kernel_desc(name, vgpr, accum, sgpr=102):
    return f'''.amdhsa_kernel {name}
  .amdhsa_next_free_vgpr {vgpr}
  .amdhsa_next_free_sgpr {sgpr}
  .amdhsa_accum_offset {accum}
  .amdhsa_group_segment_fixed_size 0
  .amdhsa_kernarg_size 88
  .amdhsa_user_sgpr_count 2
  .amdhsa_user_sgpr_kernarg_segment_ptr 1
  .amdhsa_system_sgpr_workgroup_id_x 1
.end_amdhsa_kernel'''.split('\n')
```

```python
import sys, struct
from asmlib import *

BASE = 'recurrent_scan__linear_kernel_hedgehog__glu_gated_geglu__prompt'
MB = 1 << 20
XN, HF, OF, KVP, YP = 0, 4 * MB, 20 * MB, 24 * MB, 28 * MB
KVS = 2176
MF = 'v_mfma_f32_16x16x32_bf16'
LOG2E = 1.4426950408889634


def f2u(x):
    return '0x%08x' % struct.unpack('<I', struct.pack('<f', x))[0]


def srd(a, r, lo, hi, size, add=None):
    if add is None:
        a(f's_mov_b32 s{r}, {lo}\ns_mov_b32 s{r + 1}, {hi}')
    else:
        a(f's_add_u32 s{r}, {lo}, {add}\ns_addc_u32 s{r + 1}, {hi}, 0')
    a(f's_mov_b32 s{r + 2}, {size}\ns_mov_b32 s{r + 3}, 0x20000')


def bcast(reg):
    return f'v[{reg & ~1}:{(reg & ~1) + 1}]', reg & 1


def k0(name):
    a = Asm()
    a('s_cmp_ge_u32 s2, 256\ns_cbranch_scc1 L0_end')
    a('s_load_dwordx2 s[4:5], s[0:1], 0\ns_load_dwordx2 s[6:7], s[0:1], 80')
    a('v_lshrrev_b32 v1, 6, v0\nv_and_b32 v0, 63, v0\nv_readfirstlane_b32 s3, v1\nv_lshlrev_b32 v1, 4, v0')
    a('s_lshl_b32 s16, s2, 14\ns_lshl_b32 s17, s3, 12\ns_add_u32 s16, s16, s17')
    a('s_waitcnt lgkmcnt(0)')
    srd(a, 8, 's4', 's5', 4 * MB)
    for n in range(4):
        a(f'buffer_load_dwordx4 v[{4 + 4 * n}:{7 + 4 * n}], v1, s[8:11], s16 offen offset:{1024 * n}')
    srd(a, 12, 's6', 's7', 4 * MB)
    a('s_lshl_b32 s17, s3, 1')
    a('v_and_b32 v2, 7, v0\nv_xor_b32 v3, s17, v2\nv_lshlrev_b32 v3, 4, v3\nv_lshl_add_u32 v60, v0, 7, v3\nv_xor_b32 v61, 16, v60')
    a('v_lshrrev_b32 v3, 3, v0\nv_xor_b32 v62, v3, v2\nv_lshlrev_b32 v62, 4, v62\nv_lshl_add_u32 v62, v3, 7, v62')
    a('s_lshl_b32 s17, s3, 12\nv_add_u32 v62, s17, v62')
    a('v_and_b32 v3, 3, v3\nv_lshlrev_b32 v3, 8, v3\nv_lshl_add_u32 v63, v2, 4, v3\nv_lshrrev_b32 v3, 5, v0\nv_lshl_add_u32 v63, v3, 12, v63')
    a('s_lshr_b32 s18, s2, 5\ns_lshl_b32 s18, s18, 19\ns_bfe_u32 s19, s2, 0x20003\ns_lshl_b32 s19, s19, 13\ns_add_u32 s18, s18, s19')
    a('s_bfe_u32 s19, s2, 0x20001\ns_lshl_b32 s19, s19, 10\ns_add_u32 s18, s18, s19\ns_and_b32 s19, s2, 1\ns_lshl_b32 s19, s19, 7\ns_add_u32 s18, s18, s19')
    a('s_lshl_b32 s19, s3, 17\ns_add_u32 s18, s18, s19')
    F = lambda tt, e: 20 + 16 * tt + e
    for tt in range(2):
        a(f's_waitcnt vmcnt({2 - 2 * tt})')
        for d in range(8):
            a(f'v_lshlrev_b32 v{F(tt, 2 * d)}, 16, v{4 + 8 * tt + d}\nv_and_b32 v{F(tt, 2 * d + 1)}, 0xffff0000, v{4 + 8 * tt + d}')

    def allreduce(x, y):
        for sh in (8, 4, 2, 1):
            a(f'v_add_f32_dpp v{x}, v{x}, v{x} row_ror:{sh} row_mask:0xf bank_mask:0xf')
            a(f'v_add_f32_dpp v{y}, v{y}, v{y} row_ror:{sh} row_mask:0xf bank_mask:0xf')
        a(f'v_permlane16_swap_b32 v{x}, v{y}\nv_add_f32 v{x}, v{x}, v{y}\nv_mov_b32 v{y}, v{x}')
        a(f'v_permlane32_swap_b32 v{x}, v{y}\nv_add_f32 v{x}, v{x}, v{y}')

    P = lambda r: f'v[{r}:{r + 1}]'
    for tt in range(2):
        t = 4 + 8 * tt
        for d in range(4): a(f'v_pk_add_f32 {P(t + 2 * d)}, {P(F(tt, 4 * d))}, {P(F(tt, 4 * d + 2))}')
        a(f'v_pk_add_f32 {P(t)}, {P(t)}, {P(t + 2)}\nv_pk_add_f32 {P(t + 4)}, {P(t + 4)}, {P(t + 6)}\nv_pk_add_f32 {P(t)}, {P(t)}, {P(t + 4)}')
        a(f'v_add_f32 v{52 + tt}, v{t}, v{t + 1}')
    allreduce(52, 53)
    a(f'v_mul_f32 v52, {f2u(-1.0 / 1024)}, v52')
    a('v_cvt_pk_bf16_f32 v54, v52, v52\nv_readlane_b32 s20, v52, 0\nv_readlane_b32 s22, v52, 16\nv_lshlrev_b32 v54, 16, v54')
    for tt in range(2):
        t = 4 + 8 * tt
        for d in range(8):
            q = t + 2 + 2 * (d & 1)
            a(f'v_pk_add_f32 {P(q)}, {P(F(tt, 2 * d))}, s[{20 + 2 * tt}:{21 + 2 * tt}] op_sel_hi:[1,0]')
            a(f'v_pk_mul_f32 {P(t)}, {P(q)}, {P(q)}' if d == 0 else f'v_pk_fma_f32 {P(t)}, {P(q)}, {P(q)}, {P(t)}')
        a(f'v_add_f32 v{52 + tt}, v{t}, v{t + 1}')
    a('v_readlane_b32 s24, v54, 0\nv_readlane_b32 s26, v54, 16')
    allreduce(52, 53)
    rnd = 'v_cvt_pk_bf16_f32 v52, v52, v52\nv_lshlrev_b32 v52, 16, v52'
    a(f'v_mul_f32 v52, {f2u(1.0 / 1024)}, v52\n{rnd}\nv_add_f32 v52, {f2u(1e-5)}, v52\n{rnd}\nv_sqrt_f32 v52, v52\n{rnd}\nv_rcp_f32 v52, v52')
    a('s_nop 0\nv_readlane_b32 s28, v52, 0\nv_readlane_b32 s30, v52, 16')
    for tt in range(2):
        for d in range(8):
            f = F(tt, 2 * d)
            a(f'v_pk_add_f32 {P(f)}, {P(f)}, s[{24 + 2 * tt}:{25 + 2 * tt}] op_sel_hi:[1,0]')
            a(f'v_cvt_pk_bf16_f32 v{f + 1}, v{f}, v{f + 1}\nv_lshlrev_b32 v{f}, 16, v{f + 1}\nv_and_b32 v{f + 1}, 0xffff0000, v{f + 1}')
            a(f'v_pk_mul_f32 {P(f)}, {P(f)}, s[{28 + 2 * tt}:{29 + 2 * tt}] op_sel_hi:[1,0]')
            a(f'v_cvt_pk_bf16_f32 v{4 + 8 * tt + d}, v{f}, v{f + 1}')
        for hf in range(2):
            r = 4 + 8 * tt + 4 * hf
            a(f'ds_write_b128 v{60 + tt}, v[{r}:{r + 3}] offset:{8192 * hf}')
    a('s_waitcnt lgkmcnt(0)\ns_barrier')
    for n in range(4): a(f'ds_read_b128 v[{4 + 4 * n}:{7 + 4 * n}], v62 offset:{1024 * n}')
    for n in range(4):
        a(f's_waitcnt lgkmcnt({3 - n})')
        a(f'buffer_store_dwordx4 v[{4 + 4 * n}:{7 + 4 * n}], v63, s[12:15], s18 offen')
        if n < 3: a('s_add_u32 s18, s18, 32768')
    a('L0_end:\ns_endpgm')
    return kernel_header(name) + pad_hazards(a.L), kernel_desc(name, 64, 64, 40)


def wg_decode(a):
    a('s_bfe_u32 s17, s2, 0x20001\ns_and_b32 s18, s2, 1\ns_lshl_b32 s18, s18, 2\ns_bfe_u32 s19, s2, 0x20003\ns_add_u32 s18, s18, s19\ns_lshr_b32 s19, s2, 5')


def reduce4(a, r, op):
    a(f'v_permlane16_swap_b32 v{r[0]}, v{r[1]}\nv_permlane16_swap_b32 v{r[2]}, v{r[3]}')
    a(f'{op} v{r[0]}, v{r[0]}, v{r[1]}\n{op} v{r[2]}, v{r[2]}, v{r[3]}')
    a(f'v_permlane32_swap_b32 v{r[0]}, v{r[2]}\n{op} v{r[0]}, v{r[0]}, v{r[2]}')


def gather4(a, r):
    a(f'v_mov_b32 v{r[2]}, v{r[0]}\nv_permlane32_swap_b32 v{r[0]}, v{r[2]}')
    a(f'v_mov_b32 v{r[1]}, v{r[0]}\nv_mov_b32 v{r[3]}, v{r[2]}')
    a(f'v_permlane16_swap_b32 v{r[0]}, v{r[1]}\nv_permlane16_swap_b32 v{r[2]}, v{r[3]}')


def zip2(x, y):
    out = []
    for n in range(max(len(x), len(y))):
        out += x[n:n + 1] + y[n:n + 1]
    return out


def softmax_pm(a, Pp, Pn, S0, S1, T, sc, snc):
    P = lambda r: f'v[{r}:{r + 1}]'
    for m in range(4):
        for ft in range(2):
            for d in range(2):
                r = Pp[ft] + 4 * m + 2 * d
                a(f'v_cvt_pk_bf16_f32 v{r + 1}, v{r}, v{r + 1}\nv_lshlrev_b32 v{r}, 16, v{r + 1}\nv_and_b32 v{r + 1}, 0xffff0000, v{r + 1}')
        x = [Pp[ft] + 4 * m + r for ft in range(2) for r in range(4)]
        for S, o3, o2 in ((S0, 'v_max3_f32', 'v_max_f32'), (S1, 'v_min3_f32', 'v_min_f32')):
            a(f'{o3} v{S[m]}, v{x[0]}, v{x[1]}, v{x[2]}\n{o3} v{S[m]}, v{S[m]}, v{x[3]}, v{x[4]}\n{o3} v{S[m]}, v{S[m]}, v{x[5]}, v{x[6]}\n{o2} v{S[m]}, v{S[m]}, v{x[7]}')
    u, w = Asm(), Asm()
    reduce4(u, S0, 'v_max_f32'); u(f'v_mul_f32 v{S0[0]}, s{snc}, v{S0[0]}'); gather4(u, S0)
    reduce4(w, S1, 'v_min_f32'); w(f'v_mul_f32 v{S1[0]}, s{sc}, v{S1[0]}'); gather4(w, S1)
    a.ext(zip2(u.L, w.L))
    for m in range(4):
        for S, D, c in ((S1, Pn, snc), (S0, Pp, sc)):
            b, hi = bcast(S[m])
            for ft in range(2):
                for d in range(2):
                    a(f'v_pk_fma_f32 {P(D[ft] + 4 * m + 2 * d)}, {P(Pp[ft] + 4 * m + 2 * d)}, s[{c}:{c + 1}], {b} op_sel:[0,0,{hi}] op_sel_hi:[1,0,{hi}]')
            for ft in range(2):
                for r in range(4): a(f'v_exp_f32 v{D[ft] + 4 * m + r}, v{D[ft] + 4 * m + r}')
            a(f'v_pk_add_f32 {P(T)}, {P(D[0] + 4 * m)}, {P(D[0] + 4 * m + 2)}\nv_pk_add_f32 {P(T)}, {P(T)}, {P(D[1] + 4 * m)}')
            a(f'v_pk_add_f32 {P(T)}, {P(T)}, {P(D[1] + 4 * m + 2)}\nv_add_f32 v{S[m]}, v{T}, v{T + 1}')
    u, w = Asm(), Asm()
    reduce4(u, S0, 'v_add_f32'); u(f'v_rcp_f32 v{S0[0]}, v{S0[0]}'); gather4(u, S0)
    reduce4(w, S1, 'v_add_f32'); w(f'v_rcp_f32 v{S1[0]}, v{S1[0]}'); gather4(w, S1)
    a.ext(zip2(u.L, w.L))
    for m in range(4):
        for S, D in ((S0, Pp), (S1, Pn)):
            b, hi = bcast(S[m])
            for ft in range(2):
                for d in range(2):
                    r = D[ft] + 4 * m + 2 * d
                    a(f'v_pk_mul_f32 {P(r)}, {P(r)}, {b} op_sel:[0,{hi}] op_sel_hi:[1,{hi}]')
            pack_frag(a, D[0] + 4 * m, D[0] + 4 * m, D[1] + 4 * m)


def pack_frag(a, d, x, y):
    a(f'v_cvt_pk_bf16_f32 v{d}, v{x}, v{x + 1}\nv_cvt_pk_bf16_f32 v{d + 1}, v{x + 2}, v{x + 3}')
    a(f'v_cvt_pk_bf16_f32 v{d + 2}, v{y}, v{y + 1}\nv_cvt_pk_bf16_f32 v{d + 3}, v{y + 2}, v{y + 3}')


def poll(a, lab, vtmp, vzero, srdr, soff, target):
    a(f's_mov_b32 s16, 0\n{lab}:')
    a(f'buffer_load_dword v{vtmp}, v{vzero}, s[{srdr}:{srdr + 3}], {soff} offen sc1\ns_waitcnt vmcnt(0)')
    a(f'v_readfirstlane_b32 s15, v{vtmp}\ns_add_u32 s16, s16, 1\ns_cmp_ge_u32 s15, {target}\ns_cbranch_scc1 {lab}_ok')
    a(f's_sleep 2\ns_cmp_lt_u32 s16, 0x100000\ns_cbranch_scc1 {lab}\n{lab}_ok:')


STAGE = 40960
WPHI = 3 * STAGE
K1_LDS = WPHI + 2048


def k1(name):
    a = Asm()
    tiles = ['q0', 'q1', 'k0', 'k1', 'v0', 'v1'] + [f'{c}{t}' for t in range(7) for c in 'gu']
    home = {}
    for n, t in enumerate(['k0', 'k1', 'v0', 'v1'] + [f'g{t}' for t in range(7)] + [f'u{t}' for t in range(4)]): home[t] = ('v', 16 + 16 * n)
    for n, t in enumerate(['q0', 'q1', 'u4', 'u5', 'u6']): home[t] = ('a', 16 * n)
    acc = lambda t, m: vr(home[t][0], home[t][1] + 4 * m, 4)
    B0, A0 = 80, 112
    bfr = lambda T, ks: vr('a', B0 + 8 * (T % 4) + 4 * ks, 4)
    afr = lambda s, ks, m: vr('a', A0 + 32 * (s % 2) + 16 * ks + 4 * m, 4)

    a('s_cmp_ge_u32 s2, 256\ns_cbranch_scc1 L1_end')
    a('s_load_dwordx4 s[4:7], s[0:1], 8\ns_load_dwordx4 s[8:11], s[0:1], 40\ns_load_dwordx4 s[12:15], s[0:1], 72')
    a('v_lshrrev_b32 v1, 6, v0\nv_and_b32 v0, 63, v0\nv_readfirstlane_b32 s3, v1')
    wg_decode(a)
    a('s_lshl_b32 s17, s17, 3\ns_add_u32 s19, s19, s17')
    a('s_lshl_b32 s16, s3, 13\nv_lshlrev_b32 v10, 4, v0\nv_add_u32 v10, s16, v10\nv_add_u32 v11, 4096, v10')
    a('v_lshrrev_b32 v1, 4, v0\nv_bfe_u32 v15, v0, 2, 2\nv_lshl_add_u32 v9, v1, 3, v15')
    a('s_lshr_b32 s16, s3, 1\ns_lshl_b32 s16, s16, 5\ns_and_b32 s66, s3, 1\ns_lshl_b32 s17, s66, 2\ns_add_u32 s16, s16, s17\nv_add_u32 v9, s16, v9')
    a('v_mul_u32_u24 v9, 6144, v9\nv_and_b32 v12, 1, v1\nv_lshlrev_b32 v12, 1, v12\nv_and_b32 v13, 3, v0\nv_xor_b32 v12, v12, v13\nv_lshl_add_u32 v9, v12, 4, v9')
    a('s_mov_b32 s52, 0\ns_lshl_b32 s54, s19, 6\ns_add_u32 s55, s54, 2048\ns_add_u32 s56, s54, 4096')
    a(f's_mul_i32 s53, s19, 224\ns_mul_i32 s16, s66, {32 * 7168}\ns_add_u32 s53, s53, s16')
    a('s_mul_i32 s59, s3, 7168\ns_add_u32 s59, s59, 12288\ns_lshl_b32 s60, s3, 10')
    a(f's_mov_b32 s57, 0\ns_mov_b32 s58, 0\ns_mov_b32 s64, {STAGE}\ns_mov_b32 s61, s59\ns_mov_b32 s62, s60')
    a('s_and_b32 s67, s19, 1')
    a('s_waitcnt lgkmcnt(0)')
    a('s_lshl_b32 s16, s18, 19')
    srd(a, 20, 's14', 's15', 0x80000, 's16')
    srd(a, 28, 's4', 's5', 1024 * 6144)
    aload = lambda s, ks, m: f'buffer_load_dwordx4 {afr(s, ks, m)}, v{10 + ks}, s[20:23], s52 offen offset:{1024 * m}'
    dma_m0 = lambda p: f's_add_u32 m0, s61, {1024 * p}' if p < 7 else f's_add_u32 m0, s62, {4096 * (p - 7)}'
    dma_ld = lambda p: f'buffer_load_dwordx4 v{2 + p}, s[24:27], s53 offen lds' if p < 7 else f'buffer_load_dwordx4 v9, s[28:31], s{54 + p - 7} offen lds'
    adv_dma = [f's_add_u32 s53, s53, {64 * 7168}'] + [f's_add_u32 s{r}, s{r}, {64 * 6144}' for r in (54, 55, 56)] + \
              [f's_add_u32 s57, s57, {STAGE}', f's_cmp_eq_u32 s57, {3 * STAGE}', 's_cselect_b32 s57, 0, s57', 's_add_u32 s61, s59, s57', 's_add_u32 s62, s60, s57']
    for p in (7, 8, 9): a(dma_m0(p)); a(dma_ld(p))
    for ks in range(2):
        for m in range(4): a(aload(0, ks, m))
    a('s_add_u32 s52, s52, 32768')
    a('s_cmp_lt_u32 s3, 2\ns_cselect_b32 s24, s8, s10\ns_cselect_b32 s25, s9, s11\ns_mov_b32 s26, 7340032\ns_mov_b32 s27, 0x20000')
    a('s_lshl_b32 s16, s67, 1\ns_movk_i32 s17, 4682')
    for p in range(7):
        a(f'v_add_u32 v14, {64 * p}, v0\nv_mul_u32_u24 v15, s17, v14\nv_lshrrev_b32 v15, 16, v15')
        a('v_mul_u32_u24 v1, 14, v15\nv_sub_u32 v14, v14, v1\nv_add_u32 v14, s16, v14\nv_subrev_u32 v1, 14, v14\nv_min_u32 v14, v14, v1')
        a(f'v_and_b32 v1, 12, v15\nv_lshlrev_b32 v1, 1, v1\nv_and_or_b32 v1, v15, 3, v1\nv_lshrrev_b32 v15, 4, v15\nv_lshl_add_u32 v1, v15, 2, v1')
        a(f'v_mul_u32_u24 v1, 7168, v1\nv_lshl_add_u32 v{2 + p}, v14, 4, v1')
        a(dma_m0(p)); a(dma_ld(p))
    srd(a, 32, 's6', 's7', 65536)
    a('s_lshl_b32 s16, s66, 10\nv_lshrrev_b32 v1, 2, v0\nv_lshlrev_b32 v1, 6, v1\nv_lshl_add_u32 v1, v12, 4, v1\nv_add_u32 v1, s16, v1')
    a(f's_add_u32 m0, s16, {WPHI}\ns_lshl_b32 s17, s19, 11\nbuffer_load_dwordx4 v1, s[32:35], s17 offen lds')
    a.ext(adv_dma)
    for p in range(10): a(dma_m0(p)); a(dma_ld(p))
    a.ext(adv_dma)
    a('v_lshrrev_b32 v1, 2, v0\nv_and_b32 v15, 3, v0\nv_lshlrev_b32 v15, 3, v15\nv_bfe_u32 v13, v0, 4, 1')
    a('v_lshl_add_u32 v12, v1, 6, v15\nv_lshl_add_u32 v12, v13, 5, v12\nv_xor_b32 v13, 32, v12')
    a('v_mul_u32_u24 v14, 224, v1\nv_add_u32 v14, v14, v15\nv_add_u32 v14, 12288, v14')
    for t in tiles:
        f, b = home[t]
        for e in range(16): a(f'v_mov_b32 v{b + e}, 0' if f == 'v' else f'v_accvgpr_write_b32 a{b + e}, 0')
    a(f's_mul_i32 s16, s18, {56 * 32768}\ns_add_u32 s16, s16, {HF}')
    srd(a, 36, 's14', 's15', 56 * 32768, 's16')
    a(f's_lshl_b32 s16, s18, 19\ns_add_u32 s16, s16, {OF}')
    srd(a, 40, 's14', 's15', 0x80000, 's16')
    a(f's_lshl_b32 s16, s19, 2\ns_add_u32 s16, s16, s3\ns_mul_i32 s16, s16, {8 * KVS}\ns_add_u32 s16, s16, {KVP}')
    srd(a, 44, 's14', 's15', 8 * KVS, 's16')
    srd(a, 48, 's12', 's13', 256)

    def bread(T, ks, h):
        t = tiles[T % 20]
        d = vr('a', B0 + 8 * (T % 4) + 4 * ks + 2 * h, 2)
        n = int(t[1])
        if t[0] in 'qkv': return f'ds_read_b64_tr_b16 {d}, v{12 + n} offset:{"qkv".index(t[0]) * 4096 + ks * 2048 + h * 1024}'
        return f'ds_read_b64_tr_b16 {d}, v14 offset:{(t[0] == "u") * 14336 + (ks * 32 + h * 16) * 224 + n * 32}'
    breads = lambda T: [bread(T, ks, h) for ks in range(2) for h in range(2)]
    a('s_mov_b32 s65, 8\ns_waitcnt vmcnt(10)\ns_barrier')
    a.ext(breads(0) + breads(1))
    a('.p2align 6\nL1_loop:')
    for u in range(2):
        for T in range(20):
            gaps = [[] for _ in range(8)]
            if T == 0: a('s_waitcnt vmcnt(10) lgkmcnt(4)')
            elif T != 19: a('s_waitcnt lgkmcnt(4)')
            rd = breads(T + 2)
            if T == 18:
                gaps[0] += [f's_add_u32 s58, s58, {STAGE}', f's_cmp_eq_u32 s58, {3 * STAGE}', 's_cselect_b32 s58, 0, s58']
                gaps[1] += [f's_cselect_b32 s63, {-2 * STAGE & 0xffffffff}, s64', 'v_add_u32 v12, s63, v12', 'v_add_u32 v13, s63, v13']
                gaps[2] += ['v_add_u32 v14, s63, v14']
                gaps[3] += ['s_waitcnt vmcnt(18) lgkmcnt(0)', 's_barrier']
                for n in range(4): gaps[4 + n].append(rd[n])
            else:
                for n in range(4): gaps[2 * n].append(rd[n])
            if T < 8: gaps[3].append(aload(u + 1, T // 4, T % 4))
            elif T < 18:
                gaps[1].append(dma_m0(T - 8)); gaps[3].append(dma_ld(T - 8))
            if T == 8: gaps[5].append('s_add_u32 s52, s52, 32768')
            if T == 19:
                for n, x in enumerate(adv_dma): gaps[1 + 2 * (n // 3)].append(x)
                if u == 1: gaps[7] += ['s_sub_u32 s65, s65, 1', 's_cmp_lg_u32 s65, 0']
            ms = [3, 2, 1, 0] if T & 1 else [0, 1, 2, 3]
            n = 0
            for x, m in enumerate(ms):
                for ks in ((0, 1) if x % 2 == 0 else (1, 0)):
                    a(f'{MF} {acc(tiles[T], m)}, {bfr(T, ks)}, {afr(u, ks, m)}, {acc(tiles[T], m)}')
                    a.ext(gaps[n]); n += 1
    a('s_cbranch_scc1 L1_loop')

    PHI, VL, KVA = 0, 32768, 49152
    K0r, K1r, V0r, V1r = (home[t][1] for t in ('k0', 'k1', 'v0', 'v1'))
    a(f's_mov_b32 s68, {f2u(LOG2E)}\ns_mov_b32 s70, {f2u(-LOG2E)}')
    a('v_subrev_u32 v12, s58, v12')
    a(f'v_add_u32 v12, {WPHI}, v12\nv_xor_b32 v13, 32, v12')
    a('v_and_b32 v1, 15, v0\nv_lshrrev_b32 v14, 4, v0\nv_lshrrev_b32 v15, 2, v1\nv_xor_b32 v15, v15, v14\nv_lshlrev_b32 v15, 3, v15')
    a('s_lshl_b32 s16, s3, 11\nv_lshl_add_u32 v11, v1, 5, v15\nv_add_u32 v11, s16, v11')
    a('s_waitcnt vmcnt(0) lgkmcnt(0)\ns_barrier')
    for ft in range(2):
        for h in range(2): a(f'ds_read_b64_tr_b16 a[{80 + 4 * ft + 2 * h}:{81 + 4 * ft + 2 * h}], v{12 + ft} offset:{1024 * h}')
    for m in range(4):
        pack_frag(a, K0r + 4 * m, K0r + 4 * m, K1r + 4 * m)
    for m in range(4):
        pack_frag(a, V0r + 4 * m, V0r + 4 * m, V1r + 4 * m)
        for dt in range(2): a(f'ds_write_b64 v11, v[{V0r + 4 * m + 2 * dt}:{V0r + 4 * m + 2 * dt + 1}] offset:{VL + dt * 8192 + m * 512}')
    a('s_waitcnt lgkmcnt(0)')
    for m in range(4):
        for ft, D in enumerate((K1r, V1r)): a(f'{MF} v[{D + 4 * m}:{D + 4 * m + 3}], a[{80 + 4 * ft}:{83 + 4 * ft}], v[{K0r + 4 * m}:{K0r + 4 * m + 3}], 0')
    a('v_and_b32 v1, 3, v0\nv_xor_b32 v1, v1, v14\nv_lshlrev_b32 v1, 3, v1\nv_lshrrev_b32 v12, 2, v0\nv_lshl_add_u32 v12, v12, 5, v1')
    a('s_lshl_b32 s16, s3, 13\nv_add_u32 v13, s16, v12')
    softmax_pm(a, (K1r, V1r), (K0r, V0r), [2, 3, 4, 5], [6, 7, 8, 9], 14, 68, 70)
    for m in range(4):
        for sg, D in enumerate((K1r, K0r)):
            for ft in range(2): a(f'ds_write_b64 v11, v[{D + 4 * m + 2 * ft}:{D + 4 * m + 2 * ft + 1}] offset:{PHI + (2 * sg + ft) * 8192 + m * 512}')
    for r in range(4): a(f'v_mov_b32 v{4 + r}, 0x3f803f80')
    a('s_waitcnt lgkmcnt(0)\ns_barrier')
    def kvreads(kk):
        b = 88 + 12 * kk
        return [f'ds_read_b64_tr_b16 a[{b + 2 * h}:{b + 2 * h + 1}], v13 offset:{PHI + kk * 1024 + h * 512}' for h in range(2)] + \
               [f'ds_read_b64_tr_b16 a[{b + 4 + 4 * dt + 2 * h}:{b + 5 + 4 * dt + 2 * h}], v12 offset:{VL + dt * 8192 + kk * 1024 + h * 512}' for dt in range(2) for h in range(2)]
    a.ext(kvreads(0) + kvreads(1))
    KV = V0r
    for kk in range(8):
        b = 88 + 12 * kk
        a(f's_waitcnt lgkmcnt({6 if kk < 7 else 0})')
        for n, src in enumerate((f'a[{b + 4}:{b + 7}]', f'a[{b + 8}:{b + 11}]', 'v[4:7]')):
            d = vr('v', KV + 4 * n, 4)
            a(f'{MF} {d}, a[{b}:{b + 3}], {src}, {d if kk else 0}')
        if kk < 6: a.ext(kvreads(kk + 2))
    a(f'v_lshlrev_b32 v8, 4, v0\nv_and_b32 v9, 48, v0\ns_mul_i32 s16, s18, {KVS}')
    a('v_mov_b32 v2, 1\nv_lshlrev_b32 v3, 8, v0\ns_lshl_b32 s72, s19, 2')
    a(f'buffer_store_dwordx4 v[{KV}:{KV + 3}], v8, s[44:47], s16 offen sc1')
    a(f'buffer_store_dwordx4 v[{KV + 4}:{KV + 7}], v8, s[44:47], s16 offen offset:1024 sc1')
    a(f'buffer_store_dwordx4 v[{KV + 8}:{KV + 11}], v9, s[44:47], s16 offen offset:2048 sc1')
    c0 = -2.0 * 0.7978845608028654 * LOG2E
    a(f'v_mov_b32 v4, {f2u(c0 * 0.044715)}\nv_mov_b32 v5, {f2u(c0)}')
    a('s_mul_i32 s73, s19, 7\ns_add_u32 s73, s73, s67\ns_lshr_b32 s73, s73, 1')
    P = lambda r: f'v[{r}:{r + 1}]'
    TT, UU = K0r, K0r + 4

    def gelu(t, m, dst):
        G = home[f'g{t}'][1] + 4 * m
        f, U = home[f'u{t}']; U += 4 * m
        if f == 'a':
            for r in range(4): a(f'v_accvgpr_read_b32 v{UU + r}, a{U + r}')
            U = UU
        for d in (0, 2): a(f'v_pk_mul_f32 {P(TT + d)}, {P(G + d)}, {P(G + d)}')
        for d in (0, 2): a(f'v_pk_fma_f32 {P(TT + d)}, {P(TT + d)}, v[4:5], v[4:5] op_sel:[0,0,1] op_sel_hi:[1,0,1]')
        for d in (0, 2): a(f'v_pk_mul_f32 {P(TT + d)}, {P(TT + d)}, {P(G + d)}')
        for r in range(4): a(f'v_exp_f32 v{TT + r}, v{TT + r}')
        for d in (0, 2): a(f'v_pk_add_f32 {P(TT + d)}, {P(TT + d)}, 1.0 op_sel_hi:[1,0]')
        for r in range(4): a(f'v_rcp_f32 v{TT + r}, v{TT + r}')
        for d in (0, 2): a(f'v_pk_mul_f32 {P(G + d)}, {P(G + d)}, {P(U + d)}')
        for d in (0, 2): a(f'v_pk_mul_f32 {P(G + d)}, {P(G + d)}, {P(TT + d)}')
        a(f'v_cvt_pk_bf16_f32 v{dst}, v{G}, v{G + 1}\nv_cvt_pk_bf16_f32 v{dst + 1}, v{G + 2}, v{G + 3}')

    def hoff(add):
        a(f's_add_u32 s16, s73, {add}' if isinstance(add, int) else f's_add_u32 s16, s73, {add}')
        a('s_lshr_b32 s17, s16, 1\ns_lshl_b32 s17, s17, 15\ns_and_b32 s16, s16, 1\ns_lshl_b32 s16, s16, 12\ns_add_u32 s74, s16, s17')
    for p in range(3):
        hoff(p)
        for m in range(4):
            d = home[f'g{2 * p}'][1] + 4 * m
            gelu(2 * p, m, d); gelu(2 * p + 1, m, d + 2)
            if p == 0 and m == 1:
                a('s_waitcnt vmcnt(1)\nbuffer_atomic_add v2, v3, s[48:51], s72 offen sc1')
            a(f'buffer_store_dwordx4 v[{d}:{d + 3}], v10, s[36:39], s74 offen offset:{1024 * m}')
    a('s_cmp_eq_u32 s67, 0\ns_cselect_b32 s75, 3, -1')
    hoff('s75')
    a('s_lshl_b32 s16, s67, 3\nv_add_u32 v1, s16, v10')
    for m in range(4):
        d = home['g6'][1] + 4 * m
        gelu(6, m, d)
        a(f'buffer_store_dwordx2 v[{d}:{d + 1}], v1, s[36:39], s74 offen offset:{1024 * m}')
    a('v_mov_b32 v15, 0')
    poll(a, 'L1_poll', 14, 15, 48, 's72', 32)
    G = home['g1'][1]
    a('s_mov_b32 s16, 0')
    for i in range(8):
        for n in range(3):
            a(f'buffer_load_dwordx4 v[{G + 12 * i + 4 * n}:{G + 12 * i + 4 * n + 3}], v{8 if n < 2 else 9}, s[44:47], s16 offen offset:{1024 * n} sc1')
        a(f's_add_u32 s16, s16, {KVS}')
    for n in range(32): a(f'v_accvgpr_read_b32 v{K0r + n}, a{n}')
    for m in range(4): pack_frag(a, K0r + 4 * m, K0r + 4 * m, K1r + 4 * m)
    for m in range(4):
        for ft, D in enumerate((K1r, V1r)): a(f'{MF} v[{D + 4 * m}:{D + 4 * m + 3}], a[{80 + 4 * ft}:{83 + 4 * ft}], v[{K0r + 4 * m}:{K0r + 4 * m + 3}], 0')
    a('s_and_b32 s16, s3, 1\ns_lshl_b32 s16, s16, 3\ns_lshr_b32 s17, s3, 1\ns_mul_i32 s17, s17, 3072\ns_add_u32 s16, s16, s17\nv_add_u32 v11, s16, v8\nv_mov_b32 v12, v8')
    softmax_pm(a, (K1r, V1r), (K0r, V0r), [2, 3, 4, 5], [6, 7, 8, 9], 14, 68, 70)
    a('s_waitcnt vmcnt(0)')
    for st in (4, 2, 1):
        for i in range(st):
            for d in range(0, 12, 2): a(f'v_pk_add_f32 {P(G + 12 * i + d)}, {P(G + 12 * i + d)}, {P(G + 12 * (i + st) + d)}')
    for n in range(3):
        r = G + 4 * n
        a(f'v_cvt_pk_bf16_f32 v{r}, v{r}, v{r + 1}\nv_cvt_pk_bf16_f32 v{r + 1}, v{r + 2}, v{r + 3}')
        a(f'ds_write_b64 v11, v[{r}:{r + 1}] offset:{KVA + 1024 * n}')
    a('s_waitcnt lgkmcnt(0)\ns_barrier')
    for n in range(6): a(f'ds_read_b128 a[{88 + 4 * n}:{91 + 4 * n}], v12 offset:{KVA + 1024 * n}')
    a('s_lshr_b32 s16, s19, 1\ns_lshl_b32 s16, s16, 15\ns_lshl_b32 s17, s67, 12\ns_add_u32 s74, s16, s17')
    a('s_waitcnt lgkmcnt(0)')
    for m in range(4):
        for n in range(3):
            d = vr('v', G + 12 * m + 4 * n, 4)
            for kp, D in enumerate((K1r, K0r)):
                a(f'{MF} {d}, a[{88 + 12 * kp + 4 * n}:{91 + 12 * kp + 4 * n}], v[{D + 4 * m}:{D + 4 * m + 3}], {d if kp else 0}')
    for m in range(4):
        r = G + 12 * m
        a(f'v_add_f32 v{r + 8}, {f2u(1e-6)}, v{r + 8}\nv_rcp_f32 v{r + 8}, v{r + 8}')
    for m in range(4):
        r = G + 12 * m
        for d in range(0, 8, 2): a(f'v_pk_mul_f32 {P(r + d)}, {P(r + d)}, {P(r + 8)} op_sel_hi:[1,0]')
        pack_frag(a, r, r, r + 4)
        a(f'buffer_store_dwordx4 v[{r}:{r + 3}], v10, s[40:43], s74 offen offset:{1024 * m}')
    a('L1_end:\ns_endpgm')
    return kernel_header(name) + pad_hazards(a.L), kernel_desc(name, 512, 256)


K2_LDS = 163840


def k2(name):
    a = Asm()
    YA = lambda n, m: 128 + (n * 4 + m) * 4
    SA = lambda n, m: 96 + (n * 2 + m) * 4
    vA = lambda ks, mh: 2 + 2 * ks + mh
    vD = lambda p: 6 + p
    vWo = 10
    vB = lambda u: 12 + u
    vS = lambda hi, u: 20 + 4 * hi + u
    a('s_cmp_ge_u32 s2, 256\ns_cbranch_scc1 L2_end')
    a('s_load_dwordx2 s[4:5], s[0:1], 0\ns_load_dwordx2 s[6:7], s[0:1], 24\ns_load_dwordx4 s[8:11], s[0:1], 56\ns_load_dwordx4 s[12:15], s[0:1], 72')
    a('v_lshrrev_b32 v1, 6, v0\nv_and_b32 v0, 63, v0\nv_readfirstlane_b32 s3, v1')
    wg_decode(a)
    a('s_lshr_b32 s52, s17, 1\ns_and_b32 s53, s17, 1')
    a(f's_lshl_b32 s16, s3, 13\ns_lshl_b32 s54, s52, 11\ns_add_u32 s16, s16, s54\nv_lshlrev_b32 v11, 4, v0\nv_add_u32 v{vA(0, 0)}, s16, v11')
    a(f'v_xor_b32 v{vA(0, 1)}, 2048, v{vA(0, 0)}\nv_add_u32 v{vA(1, 0)}, 4096, v{vA(0, 0)}\nv_add_u32 v{vA(1, 1)}, 4096, v{vA(0, 1)}')
    a('v_lshrrev_b32 v1, 4, v0\nv_bfe_u32 v28, v0, 1, 3\nv_xor_b32 v28, v28, v1\nv_lshlrev_b32 v28, 5, v28\nv_and_b32 v29, 1, v0\nv_lshl_add_u32 v28, v29, 4, v28')
    a(f's_lshl_b32 s16, s3, 15\nv_lshl_add_u32 v{vD(0)}, v1, 11, v28\nv_add_u32 v{vD(0)}, s16, v{vD(0)}')
    a(f'v_xor_b32 v{vD(1)}, 128, v{vD(0)}\nv_add_u32 v{vD(1)}, 8192, v{vD(1)}\nv_add_u32 v{vD(2)}, 16384, v{vD(0)}\nv_add_u32 v{vD(3)}, 16384, v{vD(1)}')
    a(f's_mul_i32 s55, s17, {896 * 2048}\ns_lshl_b32 s16, s19, 8\ns_add_u32 s55, s55, s16')
    a('s_lshl_b32 s56, s53, 7\ns_add_u32 s56, s56, s16')
    a('s_lshl_b32 s57, s3, 12')
    a('s_waitcnt lgkmcnt(0)')
    a(f's_mul_i32 s16, s18, {56 * 32768}\ns_mul_i32 s58, s17, {14 * 32768}\ns_add_u32 s16, s16, s58\ns_add_u32 s16, s16, {HF}')
    srd(a, 20, 's14', 's15', 14 * 32768, 's16')
    srd(a, 28, 's8', 's9', 3584 * 2048)

    vm = []
    free = list(range(56))
    slot = {}
    areg = lambda key: vr('a', 32 + 4 * slot[key], 4)
    state = {'sA': None, 'sD': None, 'sO': None, 'sW': None}

    def sset(key, reg, base, val):
        out = []
        if state[key] != val:
            out.append(f's_add_u32 {reg}, {base}, {val}' if base else f's_mov_b32 {reg}, {val}')
            state[key] = val
        return out

    def op_A(s, ks, m):
        slot[('y', s, ks, m)] = free.pop(0)
        return sset('sA', 's60', None, s * 32768) + [(('y', s, ks, m), f'buffer_load_dwordx4 {areg(("y", s, ks, m))}, v{vA(ks, m >> 1)}, s[20:23], s60 offen offset:{1024 * (m & 1)}')]

    def op_D(s, p):
        return [f's_add_u32 m0, s57, {(s % 4) * 16384 + p * 1024}'] + (sset('sD', 's61', 's55', s * 64 * 2048) or ['s_nop 0']) + \
               [(('D', s, p), f'buffer_load_dwordx4 v{vD(p)}, s[28:31], s61 offen lds')]

    wo_lds = lambda sg: 65536 + sg * 8192 if sg < 12 else 32768 + (sg - 12) * 8192

    def op_W(sg, p):
        return [f's_add_u32 m0, s59, {wo_lds(sg) + p * 1024}', f's_add_u32 s62, s56, {(sg * 64 + p * 8) * 2048}',
                (('W', sg, p), f'buffer_load_dwordx4 v{vWo}, s[32:35], s62 offen lds')]

    def op_O(sg, ks, m):
        slot[('o', sg, ks, m)] = free.pop(0)
        return sset('sO', 's63', None, sg * 32768) + [(('o', sg, ks, m), f'buffer_load_dwordx4 {areg(("o", sg, ks, m))}, v{vA(ks, 0)}, s[24:27], s63 offen offset:{1024 * m}')]

    def vmwait(pred):
        idx = max(n for n, t in enumerate(vm) if pred(t))
        return min(len(vm) - 1 - idx, 63)

    def emit(items):
        for it in items:
            if isinstance(it, str): a(it)
            elif callable(it[0]): a(f's_waitcnt vmcnt({vmwait(it[0])}) {it[1]}')
            else: vm.append(it[0]); a(it[1])

    for p in range(4): emit(op_D(0, p))
    for ks in range(2):
        for m in range(4): emit(op_A(0, ks, m))
    for p in range(4): emit(op_D(1, p))
    for ks in range(2):
        for m in range(4): emit(op_A(1, ks, m))
    for p in range(4): emit(op_D(2, p))
    a(f's_lshl_b32 s16, s18, 19\ns_add_u32 s16, s16, {OF}')
    srd(a, 24, 's14', 's15', 0x80000, 's16')
    srd(a, 32, 's6', 's7', 1024 * 2048)
    a(f's_lshl_b32 s64, s18, 3\ns_add_u32 s64, s64, s19\ns_mul_i32 s16, s64, {16 * 12288}\ns_add_u32 s16, s16, {YP}\ns_lshl_b32 s64, s64, 2')
    srd(a, 36, 's14', 's15', 16 * 12288, 's16')
    srd(a, 40, 's4', 's5', 4 * MB)
    srd(a, 44, 's10', 's11', 4 * MB)
    srd(a, 48, 's12', 's13', 256)
    a('s_lshl_b32 s59, s3, 11')
    a(f'v_lshrrev_b32 v1, 3, v0\nv_bfe_u32 v28, v0, 1, 2\nv_bfe_u32 v30, v0, 4, 2\nv_xor_b32 v28, v28, v30\nv_lshlrev_b32 v28, 5, v28\nv_lshl_add_u32 v28, v29, 4, v28')
    a(f's_lshl_b32 s16, s3, 15\nv_lshl_add_u32 v{vWo}, v1, 11, v28\nv_add_u32 v{vWo}, s16, v{vWo}')
    a('v_lshrrev_b32 v1, 2, v0\nv_and_b32 v28, 3, v0\nv_lshlrev_b32 v28, 3, v28\nv_and_b32 v29, 7, v1\ns_lshl_b32 s16, s53, 2\nv_xor_b32 v29, s16, v29')
    a(f'v_lshl_add_u32 v30, v1, 8, v28\nv_lshl_add_u32 v{vB(0)}, v29, 5, v30')
    for u in range(1, 8): a(f'v_xor_b32 v{vB(u)}, {32 * u}, v{vB(0)}')
    a(f'v_bfe_u32 v29, v1, 1, 2\nv_lshl_add_u32 v30, v1, 7, v28\nv_lshl_add_u32 v30, v29, 5, v30\nv_add_u32 v{vS(0, 0)}, 32768, v30')
    for u in range(1, 4): a(f'v_xor_b32 v{vS(0, u)}, {32 * u}, v{vS(0, 0)}')
    for u in range(4): a(f'v_add_u32 v{vS(1, u)}, 0x10000, v{vS(0, u)}')
    for r in range(96, 256): a(f'v_mov_b32 v{r}, 0')
    a('v_and_b32 v1, 15, v0\ns_lshl_b32 s16, s18, 8\ns_lshl_b32 s65, s3, 6\ns_add_u32 s16, s16, s65\ns_lshl_b32 s65, s52, 5\ns_add_u32 s16, s16, s65')
    a('v_add_u32 v1, s16, v1\nv_lshlrev_b32 v1, 11, v1\nv_bfe_u32 v28, v0, 4, 1\nv_lshl_add_u32 v1, v28, 5, v1\nv_lshrrev_b32 v28, 5, v0\nv_lshl_add_u32 v31, v28, 4, v1')
    a('v_add_u32 v32, 32768, v31\nv_mov_b32 v33, 1\nv_lshlrev_b32 v34, 8, v0\nv_mov_b32 v35, 0')
    a('s_mul_i32 s66, s3, 12288')

    steps = [('y', s, n) for s in range(14) for n in range(8)] + [('s', sg, n) for sg in range(16) for n in range(4)]

    def breads(T):
        if T >= len(steps): return []
        kind, s, n = steps[T]
        out = []
        for ks in range(2):
            for h in range(2):
                d = vr('a', 8 * (T % 4) + 4 * ks + 2 * h, 2)
                if kind == 'y': out.append(f'ds_read_b64_tr_b16 {d}, v{vB(n)} offset:{(s % 4) * 16384 + (ks * 32 + h * 16) * 256}')
                else:
                    o = wo_lds(s) - 32768 + (ks * 32 + h * 16) * 128
                    out.append(f'ds_read_b64_tr_b16 {d}, v{vS(o >> 16, n)} offset:{o & 0xffff}')
        return out

    extras = [('W', sg, p) for sg in range(12) for p in range(2)] + [('o', sg, ks, m) for sg in range(16) for ks in range(2) for m in range(2)]
    late_w = {11: [(12, 0), (12, 1), (13, 0), (13, 1)], 12: [(14, 0), (14, 1), (15, 0), (15, 1)]}

    def next_extra(reserve):
        if not extras: return []
        e = extras[0]
        if e[0] == 'W': extras.pop(0); return op_W(e[1], e[2])
        if len(free) <= reserve: return []
        extras.pop(0); return op_O(*e[1:])

    a(f's_waitcnt vmcnt({vmwait(lambda t: t[:2] == ("D", 0))})\ns_barrier')
    a.ext(breads(0) + breads(1))
    send = []
    for dl in range(1, 4):
        send.append(('salu', f's_xor_b32 s16, s17, {dl}\ns_mul_i32 s16, s16, {4 * 12288}\ns_add_u32 s16, s16, s66\ns_add_u32 s67, s16, {(dl - 1) * 4096}'))
        for n in range(4):
            b0, b1 = YA(4 * (dl & 1) + n, 2 * (dl >> 1)), YA(4 * (dl & 1) + n, 2 * (dl >> 1) + 1)
            t = Asm(); pack_frag(t, b0, b0, b1)
            send += [('valu', x) for x in t.L]
            send.append(('store', f'buffer_store_dwordx4 v[{b0}:{b0 + 3}], v11, s[36:39], s67 offen offset:{1024 * n} sc1'))
    RX = YA(4, 0)
    XR = 40
    for T, (kind, s, n) in enumerate(steps):
        w = []
        if n == 0: w.append(f'vmcnt({vmwait(lambda t: t[:2] == (("y", s) if kind == "y" else ("o", s)))})')
        if kind == 'y':
            gaps = [[] for _ in range(8)]
            if n != 7: w.append('lgkmcnt(4)')
            if w: a('s_waitcnt ' + ' '.join(w))
            todo = []
            if s + 2 < 14: todo.append(lambda: op_A(s + 2, n >> 2, n & 3))
            if n & 1 == 0 and s + 3 < 14: todo.append(lambda: op_D(s + 3, n >> 1))
            if n & 1 == 0 and s in late_w: todo.append(lambda: op_W(*late_w[s][n >> 1]))
            while len(todo) < 2: todo.append(lambda: next_extra(8 if s + 3 < 14 else (8 - n if s + 2 < 14 else 0)))
            rd = breads(T + 2)
            gaps[1] += todo[0]()
            if n == 6:
                pred = (lambda t: t[:2] == ('D', s + 1)) if s < 13 else (lambda t: t[0] == 'W')
                gaps[3] += [(pred, 'lgkmcnt(0)'), 's_barrier']
                for x in range(4): gaps[4 + x].append(rd[x])
            elif s == 13 and n == 7:
                for x, r in enumerate(rd + breads(T + 3)): gaps[x].insert(0, r)
            else:
                for x in range(4): gaps[2 * x].append(rd[x])
            gaps[5] += todo[1]()
            ms = [3, 2, 1, 0] if T & 1 else [0, 1, 2, 3]
            seq = [(m, ks) for x, m in enumerate(ms) for ks in ((0, 1) if x % 2 == 0 else (1, 0))]
            for x, (m, ks) in enumerate(seq):
                d = vr('v', YA(n, m), 4)
                a(f'{MF} {d}, {vr("a", 8 * (T % 4) + 4 * ks, 4)}, {areg(("y", s, ks, m))}, {d}')
                emit(gaps[x])
            if n == 7:
                for ks in range(2):
                    for m in range(4): free.append(slot[('y', s, ks, m)])
        else:
            left = len(steps) - 1 - T
            w.append(f'lgkmcnt({4 * min(left, 2)})')
            a('s_waitcnt ' + ' '.join(w))
            gaps = [[] for _ in range(4)]
            for x, r in enumerate(breads(T + 3)): gaps[x].append(r)
            gaps[1] += next_extra(0)
            if T >= 114:
                for x in range(4):
                    if send:
                        k, txt = send.pop(0)
                        gaps[x].append((('S',), txt) if k == 'store' else txt)
            if (s, n) == (7, 0):
                assert not send
                gaps[2] += [(lambda t: t[0] == 'S', ''), (('F',), 'buffer_atomic_add v33, v34, s[48:51], s64 offen sc1')]
            if s == 8:
                mm, pr = n >> 1, n & 1
                gaps[2].append((('X',), f'buffer_load_dwordx4 v[{XR + 4 * n}:{XR + 4 * n + 3}], v{31 + mm}, s[40:43], s56 offen offset:{64 * pr}'))
            ms = [1, 0] if T & 1 else [0, 1]
            seq = [(m, ks) for x, m in enumerate(ms) for ks in ((0, 1) if x % 2 == 0 else (1, 0))]
            for x, (m, ks) in enumerate(seq):
                d = vr('v', SA(n, m), 4)
                a(f'{MF} {d}, {vr("a", 8 * (T % 4) + 4 * ks, 4)}, {areg(("o", s, ks, m))}, {d}')
                emit(gaps[x])
            if n == 3:
                for ks in range(2):
                    for m in range(2): free.append(slot[('o', s, ks, m)])
            if (s, n) == (11, 3):
                assert not extras
                poll(a, 'L2_poll', 36, 35, 48, 's64', 16)
                a(f's_mul_i32 s16, s17, {4 * 12288}\ns_add_u32 s16, s16, s66')
                for dl in range(3):
                    for q in range(4):
                        r = RX + 16 * dl + 4 * q
                        a(f'buffer_load_dwordx4 v[{r}:{r + 3}], v11, s[36:39], s16 offen offset:{1024 * q} sc1')
                        vm.append(('R',))
                    if dl < 2: a('s_add_u32 s16, s16, 4096')
    P = lambda r: f'v[{r}:{r + 1}]'
    a(f's_mov_b32 s68, {f2u(-LOG2E)}\ns_waitcnt vmcnt(0)')
    T0 = 60
    for n in range(4):
        for m in range(2):
            y, sacc = YA(n, m), SA(n, m)
            for dl in range(3):
                r = RX + 16 * dl + 4 * n + 2 * m
                for d in range(2):
                    a(f'v_lshlrev_b32 v{T0 + 2 * d}, 16, v{r + d}\nv_and_b32 v{T0 + 2 * d + 1}, 0xffff0000, v{r + d}')
                for d in (0, 2): a(f'v_pk_add_f32 {P(y + d)}, {P(y + d)}, {P(T0 + d)}')
            for d in (0, 2): a(f'v_pk_mul_f32 {P(T0 + d)}, {P(y + d)}, s[68:69] op_sel_hi:[1,0]')
            for r in range(4): a(f'v_exp_f32 v{T0 + r}, v{T0 + r}')
            for d in (0, 2): a(f'v_pk_add_f32 {P(T0 + d)}, {P(T0 + d)}, 1.0 op_sel_hi:[1,0]')
            for r in range(4): a(f'v_rcp_f32 v{T0 + r}, v{T0 + r}')
            for d in (0, 2): a(f'v_pk_mul_f32 {P(y + d)}, {P(y + d)}, {P(sacc + d)}')
            for d in (0, 2): a(f'v_pk_mul_f32 {P(y + d)}, {P(y + d)}, {P(T0 + d)}')
            q = 64 + 8 * m + 2 * n
            a(f'v_cvt_pk_bf16_f32 v{q}, v{y}, v{y + 1}\nv_cvt_pk_bf16_f32 v{q + 1}, v{y + 2}, v{y + 3}')
    for m in range(2):
        for pr in range(2):
            q = 64 + 8 * m + 4 * pr
            x = XR + 4 * (2 * m + pr)
            a(f'v_permlane16_swap_b32 v{q}, v{q + 2}\nv_permlane16_swap_b32 v{q + 1}, v{q + 3}')
            for d in range(4):
                a(f'v_lshlrev_b32 v{T0}, 16, v{q + d}\nv_and_b32 v{T0 + 1}, 0xffff0000, v{q + d}')
                a(f'v_lshlrev_b32 v{T0 + 2}, 16, v{x + d}\nv_and_b32 v{T0 + 3}, 0xffff0000, v{x + d}')
                a(f'v_pk_add_f32 {P(T0)}, {P(T0)}, {P(T0 + 2)}\nv_cvt_pk_bf16_f32 v{x + d}, v{T0}, v{T0 + 1}')
            a(f'buffer_store_dwordx4 v[{x}:{x + 3}], v{31 + m}, s[44:47], s56 offen offset:{64 * pr}')
    a('L2_end:\ns_endpgm')
    return kernel_header(name) + pad_hazards(a.L), kernel_desc(name, 512, 256)


def build():
    ks = [('ln_kernel', k0, 16384), ('proj_kernel', k1, K1_LDS), ('down_kernel', k2, K2_LDS)]
    head = [f'; @launch kernel={n} grid=(256,1,1) block=(256,1,1) lds={l}' for n, _, l in ks]
    head.append('.amdgcn_target "amdgcn-amd-amdhsa--gfx950"')
    body, desc = [], ['.section .rodata,"a"']
    for n, f, _ in ks:
        b, d = f(n)
        body += b; desc += ['.p2align 6'] + d
    return '\n'.join(head + body + desc) + '\n'


if __name__ == '__main__':
    out = sys.argv[1] if len(sys.argv) > 1 else f'cdna_kernels/{BASE}.s'
    open(out, 'w').write(build())
```

```python
import sys, struct
from asmlib import *

BASE = 'recurrent_scan__linear_kernel_hedgehog__glu_gated_geglu__prompt'
MB = 1 << 20
XN, HF, OF, KVP, YP = 0, 4 * MB, 20 * MB, 24 * MB, 28 * MB
KVS = 2176
FK, FY = 44 * MB, 45 * MB
MF = 'v_mfma_f32_16x16x32_bf16'
STAMPS = 48 * MB
OPT = set()


def stamp(a, n):
    if 'stamp' in OPT:
        a(f's_memrealtime s[{80 + 2 * n}:{81 + 2 * n}]\ns_waitcnt lgkmcnt(0)')


def stamp_out(a, kidx, n):
    if 'stamp' in OPT:
        a('s_waitcnt vmcnt(0)')
        stamp(a, n)
        a(f's_load_dwordx2 s[4:5], s[0:1], 80\ns_waitcnt lgkmcnt(0)\ns_add_u32 s4, s4, {STAMPS + kidx * 65536}\ns_addc_u32 s5, s5, 0\ns_mov_b32 s6, 65536\ns_mov_b32 s7, 0x20000')
        a('s_lshl_b32 s16, s2, 8\ns_lshl_b32 s17, s3, 6\ns_add_u32 s16, s16, s17\nv_lshlrev_b32 v1, 20, v0')
        for q in range(n + 1): a(f'v_mov_b32 v2, s{80 + 2 * q}\nbuffer_store_dword v2, v1, s[4:7], s16 offen offset:{4 * q}')
LOG2E = 1.4426950408889634


def f2u(x):
    return '0x%08x' % struct.unpack('<I', struct.pack('<f', x))[0]


def srd(a, r, lo, hi, size, add=None):
    if add is None:
        a(f's_mov_b32 s{r}, {lo}\ns_mov_b32 s{r + 1}, {hi}')
    else:
        a(f's_add_u32 s{r}, {lo}, {add}\ns_addc_u32 s{r + 1}, {hi}, 0')
    a(f's_mov_b32 s{r + 2}, {size}\ns_mov_b32 s{r + 3}, 0x20000')


def bcast(reg):
    return f'v[{reg & ~1}:{(reg & ~1) + 1}]', reg & 1


def k0(name):
    a = Asm()
    a('s_cmp_ge_u32 s2, 256\ns_cbranch_scc1 L0_end')
    stamp(a, 0)
    a('s_load_dwordx2 s[4:5], s[0:1], 0\ns_load_dwordx2 s[6:7], s[0:1], 80')
    a('v_lshrrev_b32 v1, 6, v0\nv_and_b32 v0, 63, v0\nv_readfirstlane_b32 s3, v1\nv_lshlrev_b32 v1, 4, v0')
    a('s_lshl_b32 s16, s2, 14\ns_lshl_b32 s17, s3, 12\ns_add_u32 s16, s16, s17')
    a('s_waitcnt lgkmcnt(0)')
    srd(a, 8, 's4', 's5', 4 * MB)
    for n in range(4):
        a(f'buffer_load_dwordx4 v[{4 + 4 * n}:{7 + 4 * n}], v1, s[8:11], s16 offen offset:{1024 * n}')
    srd(a, 12, 's6', 's7', 4 * MB)
    srd(a, 32, 's6', 's7', 2 * MB, FK)
    a('s_lshl_b32 s36, s2, 9\ns_lshl_b32 s37, s3, 7\ns_add_u32 s36, s36, s37\nv_lshlrev_b32 v56, 20, v0\nv_mov_b32 v57, 0')
    a('buffer_store_dword v57, v56, s[32:35], s36 offen')
    a('s_lshl_b32 s17, s3, 1')
    a('v_and_b32 v2, 7, v0\nv_xor_b32 v3, s17, v2\nv_lshlrev_b32 v3, 4, v3\nv_lshl_add_u32 v60, v0, 7, v3\nv_xor_b32 v61, 16, v60')
    a('v_lshrrev_b32 v3, 3, v0\nv_xor_b32 v62, v3, v2\nv_lshlrev_b32 v62, 4, v62\nv_lshl_add_u32 v62, v3, 7, v62')
    a('s_lshl_b32 s17, s3, 12\nv_add_u32 v62, s17, v62')
    a('v_and_b32 v3, 3, v3\nv_lshlrev_b32 v3, 8, v3\nv_lshl_add_u32 v63, v2, 4, v3\nv_lshrrev_b32 v3, 5, v0\nv_lshl_add_u32 v63, v3, 12, v63')
    a('s_lshr_b32 s18, s2, 5\ns_lshl_b32 s18, s18, 19\ns_bfe_u32 s19, s2, 0x20003\ns_lshl_b32 s19, s19, 13\ns_add_u32 s18, s18, s19')
    a('s_bfe_u32 s19, s2, 0x20001\ns_lshl_b32 s19, s19, 10\ns_add_u32 s18, s18, s19\ns_and_b32 s19, s2, 1\ns_lshl_b32 s19, s19, 7\ns_add_u32 s18, s18, s19')
    a('s_lshl_b32 s19, s3, 17\ns_add_u32 s18, s18, s19')
    F = lambda tt, e: 20 + 16 * tt + e
    for tt in range(2):
        a(f's_waitcnt vmcnt({3 - 2 * tt})')
        for d in range(8):
            a(f'v_lshlrev_b32 v{F(tt, 2 * d)}, 16, v{4 + 8 * tt + d}\nv_and_b32 v{F(tt, 2 * d + 1)}, 0xffff0000, v{4 + 8 * tt + d}')

    stamp(a, 1)

    def allreduce(x, y):
        for sh in (8, 4, 2, 1):
            a(f'v_add_f32_dpp v{x}, v{x}, v{x} row_ror:{sh} row_mask:0xf bank_mask:0xf')
            a(f'v_add_f32_dpp v{y}, v{y}, v{y} row_ror:{sh} row_mask:0xf bank_mask:0xf')
        a(f'v_permlane16_swap_b32 v{x}, v{y}\nv_add_f32 v{x}, v{x}, v{y}\nv_mov_b32 v{y}, v{x}')
        a(f'v_permlane32_swap_b32 v{x}, v{y}\nv_add_f32 v{x}, v{x}, v{y}')

    P = lambda r: f'v[{r}:{r + 1}]'
    for tt in range(2):
        t = 4 + 8 * tt
        for d in range(4): a(f'v_pk_add_f32 {P(t + 2 * d)}, {P(F(tt, 4 * d))}, {P(F(tt, 4 * d + 2))}')
        a(f'v_pk_add_f32 {P(t)}, {P(t)}, {P(t + 2)}\nv_pk_add_f32 {P(t + 4)}, {P(t + 4)}, {P(t + 6)}\nv_pk_add_f32 {P(t)}, {P(t)}, {P(t + 4)}')
        a(f'v_add_f32 v{52 + tt}, v{t}, v{t + 1}')
    allreduce(52, 53)
    a(f'v_mul_f32 v52, {f2u(-1.0 / 1024)}, v52')
    a('v_cvt_pk_bf16_f32 v54, v52, v52\nv_readlane_b32 s20, v52, 0\nv_readlane_b32 s22, v52, 16\nv_lshlrev_b32 v54, 16, v54')
    for tt in range(2):
        t = 4 + 8 * tt
        for d in range(8):
            q = t + 2 + 2 * (d & 1)
            a(f'v_pk_add_f32 {P(q)}, {P(F(tt, 2 * d))}, s[{20 + 2 * tt}:{21 + 2 * tt}] op_sel_hi:[1,0]')
            a(f'v_pk_mul_f32 {P(t)}, {P(q)}, {P(q)}' if d == 0 else f'v_pk_fma_f32 {P(t)}, {P(q)}, {P(q)}, {P(t)}')
        a(f'v_add_f32 v{52 + tt}, v{t}, v{t + 1}')
    a('v_readlane_b32 s24, v54, 0\nv_readlane_b32 s26, v54, 16')
    allreduce(52, 53)
    rnd = 'v_cvt_pk_bf16_f32 v52, v52, v52\nv_lshlrev_b32 v52, 16, v52'
    a(f'v_mul_f32 v52, {f2u(1.0 / 1024)}, v52\n{rnd}\nv_add_f32 v52, {f2u(1e-5)}, v52\n{rnd}\nv_sqrt_f32 v52, v52\n{rnd}\nv_rcp_f32 v52, v52')
    a('s_nop 0\nv_readlane_b32 s28, v52, 0\nv_readlane_b32 s30, v52, 16')
    for tt in range(2):
        for d in range(8):
            f = F(tt, 2 * d)
            a(f'v_pk_add_f32 {P(f)}, {P(f)}, s[{24 + 2 * tt}:{25 + 2 * tt}] op_sel_hi:[1,0]')
            a(f'v_cvt_pk_bf16_f32 v{f + 1}, v{f}, v{f + 1}\nv_lshlrev_b32 v{f}, 16, v{f + 1}\nv_and_b32 v{f + 1}, 0xffff0000, v{f + 1}')
            a(f'v_pk_mul_f32 {P(f)}, {P(f)}, s[{28 + 2 * tt}:{29 + 2 * tt}] op_sel_hi:[1,0]')
            a(f'v_cvt_pk_bf16_f32 v{4 + 8 * tt + d}, v{f}, v{f + 1}')
        for hf in range(2):
            r = 4 + 8 * tt + 4 * hf
            a(f'ds_write_b128 v{60 + tt}, v[{r}:{r + 3}] offset:{8192 * hf}')
    a('s_waitcnt lgkmcnt(0)\ns_barrier')
    for n in range(4): a(f'ds_read_b128 v[{4 + 4 * n}:{7 + 4 * n}], v62 offset:{1024 * n}')
    for n in range(4):
        a(f's_waitcnt lgkmcnt({3 - n})')
        a(f'buffer_store_dwordx4 v[{4 + 4 * n}:{7 + 4 * n}], v63, s[12:15], s18 offen')
        if n < 3: a('s_add_u32 s18, s18, 32768')
    stamp(a, 2)
    stamp_out(a, 0, 3)
    a('L0_end:\ns_endpgm')
    return kernel_header(name) + pad_hazards(a.L), kernel_desc(name, 64, 64, 102)


def wg_decode(a):
    a('s_bfe_u32 s17, s2, 0x20001\ns_and_b32 s18, s2, 1\ns_lshl_b32 s18, s18, 2\ns_bfe_u32 s19, s2, 0x20003\ns_add_u32 s18, s18, s19\ns_lshr_b32 s19, s2, 5')


def reduce4(a, r, op):
    a(f'v_permlane16_swap_b32 v{r[0]}, v{r[1]}\nv_permlane16_swap_b32 v{r[2]}, v{r[3]}')
    a(f'{op} v{r[0]}, v{r[0]}, v{r[1]}\n{op} v{r[2]}, v{r[2]}, v{r[3]}')
    a(f'v_permlane32_swap_b32 v{r[0]}, v{r[2]}\n{op} v{r[0]}, v{r[0]}, v{r[2]}')


def gather4(a, r):
    a(f'v_mov_b32 v{r[2]}, v{r[0]}\nv_permlane32_swap_b32 v{r[0]}, v{r[2]}')
    a(f'v_mov_b32 v{r[1]}, v{r[0]}\nv_mov_b32 v{r[3]}, v{r[2]}')
    a(f'v_permlane16_swap_b32 v{r[0]}, v{r[1]}\nv_permlane16_swap_b32 v{r[2]}, v{r[3]}')


def zip2(x, y):
    out = []
    for n in range(max(len(x), len(y))):
        out += x[n:n + 1] + y[n:n + 1]
    return out


def softmax_pm(a, Pp, Pn, S0, S1, T, sc, snc):
    P = lambda r: f'v[{r}:{r + 1}]'
    for m in range(4):
        for ft in range(2):
            for d in range(2):
                r = Pp[ft] + 4 * m + 2 * d
                a(f'v_cvt_pk_bf16_f32 v{r + 1}, v{r}, v{r + 1}\nv_lshlrev_b32 v{r}, 16, v{r + 1}\nv_and_b32 v{r + 1}, 0xffff0000, v{r + 1}')
        x = [Pp[ft] + 4 * m + r for ft in range(2) for r in range(4)]
        for S, o3, o2 in ((S0, 'v_max3_f32', 'v_max_f32'), (S1, 'v_min3_f32', 'v_min_f32')):
            a(f'{o3} v{S[m]}, v{x[0]}, v{x[1]}, v{x[2]}\n{o3} v{S[m]}, v{S[m]}, v{x[3]}, v{x[4]}\n{o3} v{S[m]}, v{S[m]}, v{x[5]}, v{x[6]}\n{o2} v{S[m]}, v{S[m]}, v{x[7]}')
    u, w = Asm(), Asm()
    reduce4(u, S0, 'v_max_f32'); u(f'v_mul_f32 v{S0[0]}, s{snc}, v{S0[0]}'); gather4(u, S0)
    reduce4(w, S1, 'v_min_f32'); w(f'v_mul_f32 v{S1[0]}, s{sc}, v{S1[0]}'); gather4(w, S1)
    a.ext(zip2(u.L, w.L))
    for m in range(4):
        for S, D, c in ((S1, Pn, snc), (S0, Pp, sc)):
            b, hi = bcast(S[m])
            for ft in range(2):
                for d in range(2):
                    a(f'v_pk_fma_f32 {P(D[ft] + 4 * m + 2 * d)}, {P(Pp[ft] + 4 * m + 2 * d)}, s[{c}:{c + 1}], {b} op_sel:[0,0,{hi}] op_sel_hi:[1,0,{hi}]')
            for ft in range(2):
                for r in range(4): a(f'v_exp_f32 v{D[ft] + 4 * m + r}, v{D[ft] + 4 * m + r}')
            a(f'v_pk_add_f32 {P(T)}, {P(D[0] + 4 * m)}, {P(D[0] + 4 * m + 2)}\nv_pk_add_f32 {P(T)}, {P(T)}, {P(D[1] + 4 * m)}')
            a(f'v_pk_add_f32 {P(T)}, {P(T)}, {P(D[1] + 4 * m + 2)}\nv_add_f32 v{S[m]}, v{T}, v{T + 1}')
    u, w = Asm(), Asm()
    reduce4(u, S0, 'v_add_f32'); u(f'v_rcp_f32 v{S0[0]}, v{S0[0]}'); gather4(u, S0)
    reduce4(w, S1, 'v_add_f32'); w(f'v_rcp_f32 v{S1[0]}, v{S1[0]}'); gather4(w, S1)
    a.ext(zip2(u.L, w.L))
    for m in range(4):
        for S, D in ((S0, Pp), (S1, Pn)):
            b, hi = bcast(S[m])
            for ft in range(2):
                for d in range(2):
                    r = D[ft] + 4 * m + 2 * d
                    a(f'v_pk_mul_f32 {P(r)}, {P(r)}, {b} op_sel:[0,{hi}] op_sel_hi:[1,{hi}]')
            pack_frag(a, D[0] + 4 * m, D[0] + 4 * m, D[1] + 4 * m)


def pack_frag(a, d, x, y):
    a(f'v_cvt_pk_bf16_f32 v{d}, v{x}, v{x + 1}\nv_cvt_pk_bf16_f32 v{d + 1}, v{x + 2}, v{x + 3}')
    a(f'v_cvt_pk_bf16_f32 v{d + 2}, v{y}, v{y + 1}\nv_cvt_pk_bf16_f32 v{d + 3}, v{y + 2}, v{y + 3}')


def poll(a, lab, vtmp, voff, srdr, soff):
    a(f's_mov_b32 s16, 0\n{lab}:')
    a(f'buffer_load_dword v{vtmp}, v{voff}, s[{srdr}:{srdr + 3}], {soff} offen sc1\ns_waitcnt vmcnt(0)')
    a(f'v_cmp_ne_u32 vcc, 1, v{vtmp}\ns_add_u32 s16, s16, 1\ns_nop 0\ns_cbranch_vccz {lab}_ok')
    a(f's_sleep 2\ns_cmp_lt_u32 s16, 0x100000\ns_cbranch_scc1 {lab}\n{lab}_ok:')


STAGE = 40960
WPHI = 3 * STAGE
K1_LDS = WPHI + 2048


def k1(name):
    a = Asm()
    tiles = ['q0', 'q1', 'k0', 'k1', 'v0', 'v1'] + [f'{c}{t}' for t in range(7) for c in 'gu']
    home = {}
    for n, t in enumerate(['k0', 'k1', 'v0', 'v1'] + [f'g{t}' for t in range(7)] + [f'u{t}' for t in range(4)]): home[t] = ('v', 16 + 16 * n)
    for n, t in enumerate(['q0', 'q1', 'u4', 'u5', 'u6']): home[t] = ('a', 16 * n)
    acc = lambda t, m: vr(home[t][0], home[t][1] + 4 * m, 4)
    B0, A0 = 80, 112
    bfr = lambda T, ks: vr('a', B0 + 8 * (T % 4) + 4 * ks, 4)
    afr = lambda s, ks, m: vr('a', A0 + 32 * (s % 2) + 16 * ks + 4 * m, 4)

    a('s_cmp_ge_u32 s2, 256\ns_cbranch_scc1 L1_end')
    stamp(a, 0)
    a('s_load_dwordx4 s[4:7], s[0:1], 8\ns_load_dwordx4 s[8:11], s[0:1], 40\ns_load_dwordx4 s[12:15], s[0:1], 72')
    a('v_lshrrev_b32 v1, 6, v0\nv_and_b32 v0, 63, v0\nv_readfirstlane_b32 s3, v1')
    wg_decode(a)
    a('s_lshl_b32 s17, s17, 3\ns_add_u32 s19, s19, s17')
    a('s_lshl_b32 s16, s3, 13\nv_lshlrev_b32 v10, 4, v0\nv_add_u32 v10, s16, v10\nv_add_u32 v11, 4096, v10')
    a('v_lshrrev_b32 v1, 4, v0\nv_bfe_u32 v15, v0, 2, 2\nv_lshl_add_u32 v9, v1, 3, v15')
    a('s_lshr_b32 s16, s3, 1\ns_lshl_b32 s16, s16, 5\ns_and_b32 s66, s3, 1\ns_lshl_b32 s17, s66, 2\ns_add_u32 s16, s16, s17\nv_add_u32 v9, s16, v9')
    a('v_mul_u32_u24 v9, 6144, v9\nv_and_b32 v12, 1, v1\nv_lshlrev_b32 v12, 1, v12\nv_and_b32 v13, 3, v0\nv_xor_b32 v12, v12, v13\nv_lshl_add_u32 v9, v12, 4, v9')
    a('s_mov_b32 s52, 0\ns_lshl_b32 s54, s19, 6\ns_add_u32 s55, s54, 2048\ns_add_u32 s56, s54, 4096')
    a(f's_mul_i32 s53, s19, 224\ns_mul_i32 s16, s66, {32 * 7168}\ns_add_u32 s53, s53, s16')
    a('s_mul_i32 s59, s3, 7168\ns_add_u32 s59, s59, 12288\ns_lshl_b32 s60, s3, 10')
    a(f's_mov_b32 s57, 0\ns_mov_b32 s58, 0\ns_mov_b32 s64, {STAGE}\ns_mov_b32 s61, s59\ns_mov_b32 s62, s60')
    a('s_and_b32 s67, s19, 1')
    a('s_waitcnt lgkmcnt(0)')
    a('s_lshl_b32 s16, s18, 19')
    srd(a, 20, 's14', 's15', 0x80000, 's16')
    srd(a, 28, 's4', 's5', 1024 * 6144)
    aload = lambda s, ks, m: f'buffer_load_dwordx4 {afr(s, ks, m)}, v{10 + ks}, s[20:23], s52 offen offset:{1024 * m}'
    dma_m0 = lambda p: f's_add_u32 m0, s61, {1024 * p}' if p < 7 else f's_add_u32 m0, s62, {4096 * (p - 7)}'
    dma_ld = lambda p: f'buffer_load_dwordx4 v{2 + p}, s[24:27], s53 offen lds' if p < 7 else f'buffer_load_dwordx4 v9, s[28:31], s{54 + p - 7} offen lds'
    adv_dma = [f's_add_u32 s53, s53, {64 * 7168}'] + [f's_add_u32 s{r}, s{r}, {64 * 6144}' for r in (54, 55, 56)] + \
              [f's_add_u32 s57, s57, {STAGE}', f's_cmp_eq_u32 s57, {3 * STAGE}', 's_cselect_b32 s57, 0, s57', 's_add_u32 s61, s59, s57', 's_add_u32 s62, s60, s57']
    for p in (7, 8, 9): a(dma_m0(p)); a(dma_ld(p))
    for ks in range(2):
        for m in range(4): a(aload(0, ks, m))
    a('s_add_u32 s52, s52, 32768')
    a('s_cmp_lt_u32 s3, 2\ns_cselect_b32 s24, s8, s10\ns_cselect_b32 s25, s9, s11\ns_mov_b32 s26, 7340032\ns_mov_b32 s27, 0x20000')
    a('s_lshl_b32 s16, s67, 1\ns_movk_i32 s17, 4682')
    for p in range(7):
        a(f'v_add_u32 v14, {64 * p}, v0\nv_mul_u32_u24 v15, s17, v14\nv_lshrrev_b32 v15, 16, v15')
        a('v_mul_u32_u24 v1, 14, v15\nv_sub_u32 v14, v14, v1\nv_add_u32 v14, s16, v14\nv_subrev_u32 v1, 14, v14\nv_min_u32 v14, v14, v1')
        a(f'v_and_b32 v1, 12, v15\nv_lshlrev_b32 v1, 1, v1\nv_and_or_b32 v1, v15, 3, v1\nv_lshrrev_b32 v15, 4, v15\nv_lshl_add_u32 v1, v15, 2, v1')
        a(f'v_mul_u32_u24 v1, 7168, v1\nv_lshl_add_u32 v{2 + p}, v14, 4, v1')
        a(dma_m0(p)); a(dma_ld(p))
    srd(a, 32, 's6', 's7', 65536)
    a('s_lshl_b32 s16, s66, 10\nv_lshrrev_b32 v1, 2, v0\nv_lshlrev_b32 v1, 6, v1\nv_lshl_add_u32 v1, v12, 4, v1\nv_add_u32 v1, s16, v1')
    a(f's_add_u32 m0, s16, {WPHI}\ns_lshl_b32 s17, s19, 11\nbuffer_load_dwordx4 v1, s[32:35], s17 offen lds')
    a.ext(adv_dma)
    for p in range(10): a(dma_m0(p)); a(dma_ld(p))
    a.ext(adv_dma)
    a('v_lshrrev_b32 v1, 2, v0\nv_and_b32 v15, 3, v0\nv_lshlrev_b32 v15, 3, v15\nv_bfe_u32 v13, v0, 4, 1')
    a('v_lshl_add_u32 v12, v1, 6, v15\nv_lshl_add_u32 v12, v13, 5, v12\nv_xor_b32 v13, 32, v12')
    a('v_mul_u32_u24 v14, 224, v1\nv_add_u32 v14, v14, v15\nv_add_u32 v14, 12288, v14')
    for t in tiles:
        f, b = home[t]
        for e in range(16): a(f'v_mov_b32 v{b + e}, 0' if f == 'v' else f'v_accvgpr_write_b32 a{b + e}, 0')
    a(f's_mul_i32 s16, s18, {56 * 32768}\ns_add_u32 s16, s16, {HF}')
    srd(a, 36, 's14', 's15', 56 * 32768, 's16')
    a(f's_lshl_b32 s16, s18, 19\ns_add_u32 s16, s16, {OF}')
    srd(a, 40, 's14', 's15', 0x80000, 's16')
    a(f's_lshl_b32 s16, s19, 2\ns_add_u32 s16, s16, s3\ns_mul_i32 s16, s16, {8 * KVS}\ns_add_u32 s16, s16, {KVP}')
    srd(a, 44, 's14', 's15', 8 * KVS, 's16')
    srd(a, 48, 's14', 's15', MB, FK)

    def bread(T, ks, h):
        t = tiles[T % 20]
        d = vr('a', B0 + 8 * (T % 4) + 4 * ks + 2 * h, 2)
        n = int(t[1])
        if t[0] in 'qkv': return f'ds_read_b64_tr_b16 {d}, v{12 + n} offset:{"qkv".index(t[0]) * 4096 + ks * 2048 + h * 1024}'
        return f'ds_read_b64_tr_b16 {d}, v14 offset:{(t[0] == "u") * 14336 + (ks * 32 + h * 16) * 224 + n * 32}'
    breads = lambda T: [bread(T, ks, h) for ks in range(2) for h in range(2)]
    a('s_mov_b32 s65, 8\ns_waitcnt vmcnt(10)\ns_barrier')
    stamp(a, 1)
    a.ext(breads(0) + breads(1))
    a('.p2align 6\nL1_loop:')
    for u in range(2):
        for T in range(20):
            gaps = [[] for _ in range(8)]
            if T == 0: a('s_waitcnt vmcnt(10) lgkmcnt(4)')
            elif T != 19: a('s_waitcnt lgkmcnt(4)')
            rd = breads(T + 2)
            if T == 18:
                gaps[0] += [f's_add_u32 s58, s58, {STAGE}', f's_cmp_eq_u32 s58, {3 * STAGE}', 's_cselect_b32 s58, 0, s58']
                gaps[1] += [f's_cselect_b32 s63, {-2 * STAGE & 0xffffffff}, s64', 'v_add_u32 v12, s63, v12', 'v_add_u32 v13, s63, v13']
                gaps[2] += ['v_add_u32 v14, s63, v14']
                gaps[3] += ['s_waitcnt vmcnt(18) lgkmcnt(0)', 's_barrier']
                for n in range(4): gaps[4 + n].append(rd[n])
            else:
                for n in range(4): gaps[2 * n].append(rd[n])
            if T < 8: gaps[3].append(aload(u + 1, T // 4, T % 4))
            elif T < 18:
                gaps[1].append(dma_m0(T - 8)); gaps[3].append(dma_ld(T - 8))
            if T == 8: gaps[5].append('s_add_u32 s52, s52, 32768')
            if T == 19:
                for n, x in enumerate(adv_dma): gaps[1 + 2 * (n // 3)].append(x)
                if u == 1: gaps[7] += ['s_sub_u32 s65, s65, 1', 's_cmp_lg_u32 s65, 0']
            ms = [3, 2, 1, 0] if T & 1 else [0, 1, 2, 3]
            n = 0
            for x, m in enumerate(ms):
                for ks in ((0, 1) if x % 2 == 0 else (1, 0)):
                    a(f'{MF} {acc(tiles[T], m)}, {bfr(T, ks)}, {afr(u, ks, m)}, {acc(tiles[T], m)}')
                    a.ext(gaps[n]); n += 1
    a('s_cbranch_scc1 L1_loop')

    stamp(a, 2)
    PHI, VL, KVA = 0, 32768, 49152
    K0r, K1r, V0r, V1r = (home[t][1] for t in ('k0', 'k1', 'v0', 'v1'))
    a(f's_mov_b32 s68, {f2u(LOG2E)}\ns_mov_b32 s70, {f2u(-LOG2E)}')
    a('v_subrev_u32 v12, s58, v12')
    a(f'v_add_u32 v12, {WPHI}, v12\nv_xor_b32 v13, 32, v12')
    a('v_and_b32 v1, 15, v0\nv_lshrrev_b32 v14, 4, v0\nv_lshrrev_b32 v15, 2, v1\nv_xor_b32 v15, v15, v14\nv_lshlrev_b32 v15, 3, v15')
    a('s_lshl_b32 s16, s3, 11\nv_lshl_add_u32 v11, v1, 5, v15\nv_add_u32 v11, s16, v11')
    a('s_waitcnt vmcnt(0) lgkmcnt(0)\ns_barrier')
    for ft in range(2):
        for h in range(2): a(f'ds_read_b64_tr_b16 a[{80 + 4 * ft + 2 * h}:{81 + 4 * ft + 2 * h}], v{12 + ft} offset:{1024 * h}')
    for m in range(4):
        pack_frag(a, K0r + 4 * m, K0r + 4 * m, K1r + 4 * m)
    for m in range(4):
        pack_frag(a, V0r + 4 * m, V0r + 4 * m, V1r + 4 * m)
        for dt in range(2): a(f'ds_write_b64 v11, v[{V0r + 4 * m + 2 * dt}:{V0r + 4 * m + 2 * dt + 1}] offset:{VL + dt * 8192 + m * 512}')
    a('s_waitcnt lgkmcnt(0)')
    for m in range(4):
        for ft, D in enumerate((K1r, V1r)): a(f'{MF} v[{D + 4 * m}:{D + 4 * m + 3}], a[{80 + 4 * ft}:{83 + 4 * ft}], v[{K0r + 4 * m}:{K0r + 4 * m + 3}], 0')
    a('v_and_b32 v1, 3, v0\nv_xor_b32 v1, v1, v14\nv_lshlrev_b32 v1, 3, v1\nv_lshrrev_b32 v12, 2, v0\nv_lshl_add_u32 v12, v12, 5, v1')
    a('s_lshl_b32 s16, s3, 13\nv_add_u32 v13, s16, v12')
    softmax_pm(a, (K1r, V1r), (K0r, V0r), [2, 3, 4, 5], [6, 7, 8, 9], 14, 68, 70)
    for m in range(4):
        for sg, D in enumerate((K1r, K0r)):
            for ft in range(2): a(f'ds_write_b64 v11, v[{D + 4 * m + 2 * ft}:{D + 4 * m + 2 * ft + 1}] offset:{PHI + (2 * sg + ft) * 8192 + m * 512}')
    for r in range(4): a(f'v_mov_b32 v{4 + r}, 0x3f803f80')
    a('s_waitcnt lgkmcnt(0)\ns_barrier')
    def kvreads(kk):
        b = 88 + 12 * kk
        return [f'ds_read_b64_tr_b16 a[{b + 2 * h}:{b + 2 * h + 1}], v13 offset:{PHI + kk * 1024 + h * 512}' for h in range(2)] + \
               [f'ds_read_b64_tr_b16 a[{b + 4 + 4 * dt + 2 * h}:{b + 5 + 4 * dt + 2 * h}], v12 offset:{VL + dt * 8192 + kk * 1024 + h * 512}' for dt in range(2) for h in range(2)]
    a.ext(kvreads(0) + kvreads(1))
    KV = V0r
    for kk in range(8):
        b = 88 + 12 * kk
        a(f's_waitcnt lgkmcnt({6 if kk < 7 else 0})')
        for n, src in enumerate((f'a[{b + 4}:{b + 7}]', f'a[{b + 8}:{b + 11}]', 'v[4:7]')):
            d = vr('v', KV + 4 * n, 4)
            a(f'{MF} {d}, a[{b}:{b + 3}], {src}, {d if kk else 0}')
        if kk < 6: a.ext(kvreads(kk + 2))
    a(f'v_lshlrev_b32 v8, 4, v0\nv_and_b32 v9, 48, v0\ns_mul_i32 s16, s18, {KVS}')
    a('v_mov_b32 v2, 1\nv_lshlrev_b32 v3, 20, v0\ns_lshl_b32 s72, s19, 2\ns_add_u32 s72, s72, s3\ns_lshl_b32 s72, s72, 10\ns_lshl_b32 s76, s18, 7\ns_add_u32 s76, s76, s72')
    a(f'buffer_store_dwordx4 v[{KV}:{KV + 3}], v8, s[44:47], s16 offen sc1')
    a(f'buffer_store_dwordx4 v[{KV + 4}:{KV + 7}], v8, s[44:47], s16 offen offset:1024 sc1')
    a(f'buffer_store_dwordx4 v[{KV + 8}:{KV + 11}], v9, s[44:47], s16 offen offset:2048 sc1')
    stamp(a, 3)
    c0 = -2.0 * 0.7978845608028654 * LOG2E
    a(f'v_mov_b32 v4, {f2u(c0 * 0.044715)}\nv_mov_b32 v5, {f2u(c0)}')
    a('s_mul_i32 s73, s19, 7\ns_add_u32 s73, s73, s67\ns_lshr_b32 s73, s73, 1')
    P = lambda r: f'v[{r}:{r + 1}]'
    TT, UU = K0r, K0r + 4

    def gelu(t, m, dst):
        G = home[f'g{t}'][1] + 4 * m
        f, U = home[f'u{t}']; U += 4 * m
        if f == 'a':
            for r in range(4): a(f'v_accvgpr_read_b32 v{UU + r}, a{U + r}')
            U = UU
        for d in (0, 2): a(f'v_pk_mul_f32 {P(TT + d)}, {P(G + d)}, {P(G + d)}')
        for d in (0, 2): a(f'v_pk_fma_f32 {P(TT + d)}, {P(TT + d)}, v[4:5], v[4:5] op_sel:[0,0,1] op_sel_hi:[1,0,1]')
        for d in (0, 2): a(f'v_pk_mul_f32 {P(TT + d)}, {P(TT + d)}, {P(G + d)}')
        for r in range(4): a(f'v_exp_f32 v{TT + r}, v{TT + r}')
        for d in (0, 2): a(f'v_pk_add_f32 {P(TT + d)}, {P(TT + d)}, 1.0 op_sel_hi:[1,0]')
        for r in range(4): a(f'v_rcp_f32 v{TT + r}, v{TT + r}')
        for d in (0, 2): a(f'v_pk_mul_f32 {P(G + d)}, {P(G + d)}, {P(U + d)}')
        for d in (0, 2): a(f'v_pk_mul_f32 {P(G + d)}, {P(G + d)}, {P(TT + d)}')
        a(f'v_cvt_pk_bf16_f32 v{dst}, v{G}, v{G + 1}\nv_cvt_pk_bf16_f32 v{dst + 1}, v{G + 2}, v{G + 3}')

    def hoff(add):
        a(f's_add_u32 s16, s73, {add}' if isinstance(add, int) else f's_add_u32 s16, s73, {add}')
        a('s_lshr_b32 s17, s16, 1\ns_lshl_b32 s17, s17, 15\ns_and_b32 s16, s16, 1\ns_lshl_b32 s16, s16, 12\ns_add_u32 s74, s16, s17')
    for p in range(3):
        hoff(p)
        for m in range(4):
            d = home[f'g{2 * p}'][1] + 4 * m
            gelu(2 * p, m, d); gelu(2 * p + 1, m, d + 2)
            if p == 0 and m == 1:
                a('s_waitcnt vmcnt(1)\nbuffer_store_dword v2, v3, s[48:51], s76 offen sc1')
            a(f'buffer_store_dwordx4 v[{d}:{d + 3}], v10, s[36:39], s74 offen offset:{1024 * m}')
    a('s_cmp_eq_u32 s67, 0\ns_cselect_b32 s75, 3, -1')
    hoff('s75')
    a('s_lshl_b32 s16, s67, 3\nv_add_u32 v1, s16, v10')
    for m in range(4):
        d = home['g6'][1] + 4 * m
        gelu(6, m, d)
        a(f'buffer_store_dwordx2 v[{d}:{d + 1}], v1, s[36:39], s74 offen offset:{1024 * m}')
    stamp(a, 4)
    a('v_and_b32 v15, 7, v0\nv_lshlrev_b32 v15, 7, v15')
    poll(a, 'L1_poll', 14, 15, 48, 's72')
    stamp(a, 5)
    G = home['g1'][1]
    a('s_mov_b32 s16, 0')
    for i in range(8):
        for n in range(3):
            a(f'buffer_load_dwordx4 v[{G + 12 * i + 4 * n}:{G + 12 * i + 4 * n + 3}], v{8 if n < 2 else 9}, s[44:47], s16 offen offset:{1024 * n} sc1')
        a(f's_add_u32 s16, s16, {KVS}')
    for n in range(32): a(f'v_accvgpr_read_b32 v{K0r + n}, a{n}')
    for m in range(4): pack_frag(a, K0r + 4 * m, K0r + 4 * m, K1r + 4 * m)
    for m in range(4):
        for ft, D in enumerate((K1r, V1r)): a(f'{MF} v[{D + 4 * m}:{D + 4 * m + 3}], a[{80 + 4 * ft}:{83 + 4 * ft}], v[{K0r + 4 * m}:{K0r + 4 * m + 3}], 0')
    a('s_and_b32 s16, s3, 1\ns_lshl_b32 s16, s16, 3\ns_lshr_b32 s17, s3, 1\ns_mul_i32 s17, s17, 3072\ns_add_u32 s16, s16, s17\nv_add_u32 v11, s16, v8\nv_mov_b32 v12, v8')
    softmax_pm(a, (K1r, V1r), (K0r, V0r), [2, 3, 4, 5], [6, 7, 8, 9], 14, 68, 70)
    stamp(a, 6)
    a('s_waitcnt vmcnt(0)')
    stamp(a, 7)
    for st in (4, 2, 1):
        for i in range(st):
            for d in range(0, 12, 2): a(f'v_pk_add_f32 {P(G + 12 * i + d)}, {P(G + 12 * i + d)}, {P(G + 12 * (i + st) + d)}')
    for n in range(3):
        r = G + 4 * n
        a(f'v_cvt_pk_bf16_f32 v{r}, v{r}, v{r + 1}\nv_cvt_pk_bf16_f32 v{r + 1}, v{r + 2}, v{r + 3}')
        a(f'ds_write_b64 v11, v[{r}:{r + 1}] offset:{KVA + 1024 * n}')
    a('s_waitcnt lgkmcnt(0)\ns_barrier')
    for n in range(6): a(f'ds_read_b128 a[{88 + 4 * n}:{91 + 4 * n}], v12 offset:{KVA + 1024 * n}')
    a('s_lshr_b32 s16, s19, 1\ns_lshl_b32 s16, s16, 15\ns_lshl_b32 s17, s67, 12\ns_add_u32 s74, s16, s17')
    a('s_waitcnt lgkmcnt(0)')
    for m in range(4):
        for n in range(3):
            d = vr('v', G + 12 * m + 4 * n, 4)
            for kp, D in enumerate((K1r, K0r)):
                a(f'{MF} {d}, a[{88 + 12 * kp + 4 * n}:{91 + 12 * kp + 4 * n}], v[{D + 4 * m}:{D + 4 * m + 3}], {d if kp else 0}')
    for m in range(4):
        r = G + 12 * m
        a(f'v_add_f32 v{r + 8}, {f2u(1e-6)}, v{r + 8}\nv_rcp_f32 v{r + 8}, v{r + 8}')
    for m in range(4):
        r = G + 12 * m
        for d in range(0, 8, 2): a(f'v_pk_mul_f32 {P(r + d)}, {P(r + d)}, {P(r + 8)} op_sel_hi:[1,0]')
        pack_frag(a, r, r, r + 4)
        a(f'buffer_store_dwordx4 v[{r}:{r + 3}], v10, s[40:43], s74 offen offset:{1024 * m}')
    stamp(a, 8)
    stamp_out(a, 1, 9)
    a('L1_end:\ns_endpgm')
    return kernel_header(name) + pad_hazards(a.L), kernel_desc(name, 512, 256)


K2_LDS = 163840


def k2(name):
    a = Asm()
    YA = lambda n, m: 128 + (n * 4 + m) * 4
    SA = lambda n, m: 96 + (n * 2 + m) * 4
    vA = lambda ks, mh: 2 + 2 * ks + mh
    vD = lambda p: 6 + p
    vWo = 10
    vB = lambda u: 12 + u
    vS = lambda hi, u: 20 + 4 * hi + u
    a('s_cmp_ge_u32 s2, 256\ns_cbranch_scc1 L2_end')
    stamp(a, 0)
    a('s_load_dwordx2 s[4:5], s[0:1], 0\ns_load_dwordx2 s[6:7], s[0:1], 24\ns_load_dwordx4 s[8:11], s[0:1], 56\ns_load_dwordx4 s[12:15], s[0:1], 72')
    a('v_lshrrev_b32 v1, 6, v0\nv_and_b32 v0, 63, v0\nv_readfirstlane_b32 s3, v1')
    wg_decode(a)
    a('s_lshr_b32 s52, s17, 1\ns_and_b32 s53, s17, 1')
    a(f's_lshl_b32 s16, s3, 13\ns_lshl_b32 s54, s52, 11\ns_add_u32 s16, s16, s54\nv_lshlrev_b32 v11, 4, v0\nv_add_u32 v{vA(0, 0)}, s16, v11')
    a(f'v_xor_b32 v{vA(0, 1)}, 2048, v{vA(0, 0)}\nv_add_u32 v{vA(1, 0)}, 4096, v{vA(0, 0)}\nv_add_u32 v{vA(1, 1)}, 4096, v{vA(0, 1)}')
    a('v_lshrrev_b32 v1, 4, v0\nv_bfe_u32 v28, v0, 1, 3\nv_xor_b32 v28, v28, v1\nv_lshlrev_b32 v28, 5, v28\nv_and_b32 v29, 1, v0\nv_lshl_add_u32 v28, v29, 4, v28')
    a(f's_lshl_b32 s16, s3, 15\nv_lshl_add_u32 v{vD(0)}, v1, 11, v28\nv_add_u32 v{vD(0)}, s16, v{vD(0)}')
    a(f'v_xor_b32 v{vD(1)}, 128, v{vD(0)}\nv_add_u32 v{vD(1)}, 8192, v{vD(1)}\nv_add_u32 v{vD(2)}, 16384, v{vD(0)}\nv_add_u32 v{vD(3)}, 16384, v{vD(1)}')
    a(f's_mul_i32 s55, s17, {896 * 2048}\ns_lshl_b32 s16, s19, 8\ns_add_u32 s55, s55, s16')
    a('s_lshl_b32 s56, s53, 7\ns_add_u32 s56, s56, s16')
    a('s_lshl_b32 s57, s3, 12')
    a('s_waitcnt lgkmcnt(0)')
    a(f's_mul_i32 s16, s18, {56 * 32768}\ns_mul_i32 s58, s17, {14 * 32768}\ns_add_u32 s16, s16, s58\ns_add_u32 s16, s16, {HF}')
    srd(a, 20, 's14', 's15', 14 * 32768, 's16')
    srd(a, 28, 's8', 's9', 3584 * 2048)

    vm = []
    free = list(range(56))
    slot = {}
    areg = lambda key: vr('a', 32 + 4 * slot[key], 4)
    state = {'sA': None, 'sD': None, 'sO': None, 'sW': None}

    def sset(key, reg, base, val):
        out = []
        if state[key] != val:
            out.append(f's_add_u32 {reg}, {base}, {val}' if base else f's_mov_b32 {reg}, {val}')
            state[key] = val
        return out

    def op_A(s, ks, m):
        slot[('y', s, ks, m)] = free.pop(0)
        return sset('sA', 's60', None, s * 32768) + [(('y', s, ks, m), f'buffer_load_dwordx4 {areg(("y", s, ks, m))}, v{vA(ks, m >> 1)}, s[20:23], s60 offen offset:{1024 * (m & 1)}')]

    def op_D(s, p):
        return [f's_add_u32 m0, s57, {(s % 4) * 16384 + p * 1024}'] + (sset('sD', 's61', 's55', s * 64 * 2048) or ['s_nop 0']) + \
               [(('D', s, p), f'buffer_load_dwordx4 v{vD(p)}, s[28:31], s61 offen lds')]

    wo_lds = lambda sg: 65536 + sg * 8192 if sg < 12 else 32768 + (sg - 12) * 8192

    def op_W(sg, p):
        return [f's_add_u32 m0, s59, {wo_lds(sg) + p * 1024}', f's_add_u32 s62, s56, {(sg * 64 + p * 8) * 2048}',
                (('W', sg, p), f'buffer_load_dwordx4 v{vWo}, s[32:35], s62 offen lds')]

    def op_O(sg, ks, m):
        slot[('o', sg, ks, m)] = free.pop(0)
        return sset('sO', 's63', None, sg * 32768) + [(('o', sg, ks, m), f'buffer_load_dwordx4 {areg(("o", sg, ks, m))}, v{vA(ks, 0)}, s[24:27], s63 offen offset:{1024 * m}')]

    def vmwait(pred):
        idx = max(n for n, t in enumerate(vm) if pred(t))
        return min(len(vm) - 1 - idx, 63)

    def emit(items):
        for it in items:
            if isinstance(it, str): a(it)
            elif callable(it[0]): a(f's_waitcnt vmcnt({vmwait(it[0])}) {it[1]}')
            else: vm.append(it[0]); a(it[1])

    for p in range(4): emit(op_D(0, p))
    for ks in range(2):
        for m in range(4): emit(op_A(0, ks, m))
    for p in range(4): emit(op_D(1, p))
    for ks in range(2):
        for m in range(4): emit(op_A(1, ks, m))
    for p in range(4): emit(op_D(2, p))
    a(f's_lshl_b32 s16, s18, 19\ns_add_u32 s16, s16, {OF}')
    srd(a, 24, 's14', 's15', 0x80000, 's16')
    srd(a, 32, 's6', 's7', 1024 * 2048)
    a(f's_lshl_b32 s64, s18, 3\ns_add_u32 s64, s64, s19\ns_mul_i32 s16, s64, {16 * 12288}\ns_add_u32 s16, s16, {YP}\ns_lshl_b32 s64, s64, 2\ns_add_u32 s64, s64, s3\ns_lshl_b32 s64, s64, 9\ns_lshl_b32 s70, s17, 7\ns_add_u32 s70, s70, s64')
    srd(a, 36, 's14', 's15', 16 * 12288, 's16')
    srd(a, 40, 's4', 's5', 4 * MB)
    srd(a, 44, 's10', 's11', 4 * MB)
    srd(a, 48, 's14', 's15', MB, FY)
    a('s_lshl_b32 s59, s3, 11')
    a(f'v_lshrrev_b32 v1, 3, v0\nv_bfe_u32 v28, v0, 1, 2\nv_bfe_u32 v30, v0, 4, 2\nv_xor_b32 v28, v28, v30\nv_lshlrev_b32 v28, 5, v28\nv_lshl_add_u32 v28, v29, 4, v28')
    a(f's_lshl_b32 s16, s3, 15\nv_lshl_add_u32 v{vWo}, v1, 11, v28\nv_add_u32 v{vWo}, s16, v{vWo}')
    a('v_lshrrev_b32 v1, 2, v0\nv_and_b32 v28, 3, v0\nv_lshlrev_b32 v28, 3, v28\nv_and_b32 v29, 7, v1\ns_lshl_b32 s16, s53, 2\nv_xor_b32 v29, s16, v29')
    a(f'v_lshl_add_u32 v30, v1, 8, v28\nv_lshl_add_u32 v{vB(0)}, v29, 5, v30')
    for u in range(1, 8): a(f'v_xor_b32 v{vB(u)}, {32 * u}, v{vB(0)}')
    a(f'v_bfe_u32 v29, v1, 1, 2\nv_lshl_add_u32 v30, v1, 7, v28\nv_lshl_add_u32 v30, v29, 5, v30\nv_add_u32 v{vS(0, 0)}, 32768, v30')
    for u in range(1, 4): a(f'v_xor_b32 v{vS(0, u)}, {32 * u}, v{vS(0, 0)}')
    for u in range(4): a(f'v_add_u32 v{vS(1, u)}, 0x10000, v{vS(0, u)}')
    for r in range(96, 256): a(f'v_mov_b32 v{r}, 0')
    a('v_and_b32 v1, 15, v0\ns_lshl_b32 s16, s18, 8\ns_lshl_b32 s65, s3, 6\ns_add_u32 s16, s16, s65\ns_lshl_b32 s65, s52, 5\ns_add_u32 s16, s16, s65')
    a('v_add_u32 v1, s16, v1\nv_lshlrev_b32 v1, 11, v1\nv_bfe_u32 v28, v0, 4, 1\nv_lshl_add_u32 v1, v28, 5, v1\nv_lshrrev_b32 v28, 5, v0\nv_lshl_add_u32 v31, v28, 4, v1')
    a('v_add_u32 v32, 32768, v31\nv_mov_b32 v33, 1\nv_lshlrev_b32 v34, 20, v0\nv_and_b32 v35, 3, v0\nv_lshlrev_b32 v35, 7, v35')
    a('s_mul_i32 s66, s3, 12288')

    steps = [('y', s, n) for s in range(14) for n in range(8)] + [('s', sg, n) for sg in range(16) for n in range(4)]

    def breads(T):
        if T >= len(steps): return []
        kind, s, n = steps[T]
        out = []
        for ks in range(2):
            for h in range(2):
                d = vr('a', 8 * (T % 4) + 4 * ks + 2 * h, 2)
                if kind == 'y': out.append(f'ds_read_b64_tr_b16 {d}, v{vB(n)} offset:{(s % 4) * 16384 + (ks * 32 + h * 16) * 256}')
                else:
                    o = wo_lds(s) - 32768 + (ks * 32 + h * 16) * 128
                    out.append(f'ds_read_b64_tr_b16 {d}, v{vS(o >> 16, n)} offset:{o & 0xffff}')
        return out

    extras = [('W', sg, p) for sg in range(12) for p in range(2)] + [('o', sg, ks, m) for sg in range(16) for ks in range(2) for m in range(2)]
    late_w = {11: [(12, 0), (12, 1), (13, 0), (13, 1)], 12: [(14, 0), (14, 1), (15, 0), (15, 1)]}

    def next_extra(reserve):
        if not extras: return []
        e = extras[0]
        if e[0] == 'W': extras.pop(0); return op_W(e[1], e[2])
        if len(free) <= reserve: return []
        extras.pop(0); return op_O(*e[1:])

    a(f's_waitcnt vmcnt({vmwait(lambda t: t[:2] == ("D", 0))})\ns_barrier')
    stamp(a, 1)
    a.ext(breads(0) + breads(1))
    send = []
    for dl in range(1, 4):
        send.append(('salu', f's_xor_b32 s16, s17, {dl}\ns_mul_i32 s16, s16, {4 * 12288}\ns_add_u32 s16, s16, s66\ns_add_u32 s67, s16, {(dl - 1) * 4096}'))
        for n in range(4):
            b0, b1 = YA(4 * (dl & 1) + n, 2 * (dl >> 1)), YA(4 * (dl & 1) + n, 2 * (dl >> 1) + 1)
            t = Asm(); pack_frag(t, b0, b0, b1)
            send += [('valu', x) for x in t.L]
            send.append(('store', f'buffer_store_dwordx4 v[{b0}:{b0 + 3}], v11, s[36:39], s67 offen offset:{1024 * n} sc1'))
    RX = YA(4, 0)
    XR = 40
    for T, (kind, s, n) in enumerate(steps):
        if T in (56, 112, 140): stamp(a, 2 + (56, 112, 140).index(T))
        w = []
        if n == 0: w.append(f'vmcnt({vmwait(lambda t: t[:2] == (("y", s) if kind == "y" else ("o", s)))})')
        if kind == 'y':
            gaps = [[] for _ in range(8)]
            if n != 7: w.append('lgkmcnt(4)')
            if w: a('s_waitcnt ' + ' '.join(w))
            todo = []
            if s + 2 < 14: todo.append(lambda: op_A(s + 2, n >> 2, n & 3))
            if n & 1 == 0 and s + 3 < 14: todo.append(lambda: op_D(s + 3, n >> 1))
            if n & 1 == 0 and s in late_w: todo.append(lambda: op_W(*late_w[s][n >> 1]))
            while len(todo) < 2: todo.append(lambda: next_extra(8 if s + 3 < 14 else (8 - n if s + 2 < 14 else 0)))
            rd = breads(T + 2)
            gaps[1] += todo[0]()
            if n == 6:
                pred = (lambda t: t[:2] == ('D', s + 1)) if s < 13 else (lambda t: t[0] == 'W')
                gaps[3] += [(pred, 'lgkmcnt(0)'), 's_barrier']
                for x in range(4): gaps[4 + x].append(rd[x])
            elif s == 13 and n == 7:
                for x, r in enumerate(rd + breads(T + 3)): gaps[x].insert(0, r)
            else:
                for x in range(4): gaps[2 * x].append(rd[x])
            gaps[5] += todo[1]()
            ms = [3, 2, 1, 0] if T & 1 else [0, 1, 2, 3]
            seq = [(m, ks) for x, m in enumerate(ms) for ks in ((0, 1) if x % 2 == 0 else (1, 0))]
            for x, (m, ks) in enumerate(seq):
                d = vr('v', YA(n, m), 4)
                a(f'{MF} {d}, {vr("a", 8 * (T % 4) + 4 * ks, 4)}, {areg(("y", s, ks, m))}, {d}')
                emit(gaps[x])
            if n == 7:
                for ks in range(2):
                    for m in range(4): free.append(slot[('y', s, ks, m)])
        else:
            left = len(steps) - 1 - T
            w.append(f'lgkmcnt({4 * min(left, 2)})')
            a('s_waitcnt ' + ' '.join(w))
            gaps = [[] for _ in range(4)]
            for x, r in enumerate(breads(T + 3)): gaps[x].append(r)
            gaps[1] += next_extra(0)
            if T >= 114:
                for x in range(4):
                    if send:
                        k, txt = send.pop(0)
                        gaps[x].append((('S',), txt) if k == 'store' else txt)
            if (s, n) == (7, 0):
                assert not send
                gaps[2] += [(lambda t: t[0] == 'S', ''), (('F',), 'buffer_store_dword v33, v34, s[48:51], s70 offen sc1')]
            if s == 8:
                mm, pr = n >> 1, n & 1
                gaps[2].append((('X',), f'buffer_load_dwordx4 v[{XR + 4 * n}:{XR + 4 * n + 3}], v{31 + mm}, s[40:43], s56 offen offset:{64 * pr}'))
            ms = [1, 0] if T & 1 else [0, 1]
            seq = [(m, ks) for x, m in enumerate(ms) for ks in ((0, 1) if x % 2 == 0 else (1, 0))]
            for x, (m, ks) in enumerate(seq):
                d = vr('v', SA(n, m), 4)
                a(f'{MF} {d}, {vr("a", 8 * (T % 4) + 4 * ks, 4)}, {areg(("o", s, ks, m))}, {d}')
                emit(gaps[x])
            if n == 3:
                for ks in range(2):
                    for m in range(2): free.append(slot[('o', s, ks, m)])
            if (s, n) == (11, 3):
                assert not extras
                stamp(a, 5)
                poll(a, 'L2_poll', 36, 35, 48, 's64')
                stamp(a, 6)
                a(f's_mul_i32 s16, s17, {4 * 12288}\ns_add_u32 s16, s16, s66')
                for dl in range(3):
                    for q in range(4):
                        r = RX + 16 * dl + 4 * q
                        a(f'buffer_load_dwordx4 v[{r}:{r + 3}], v11, s[36:39], s16 offen offset:{1024 * q} sc1')
                        vm.append(('R',))
                    if dl < 2: a('s_add_u32 s16, s16, 4096')
    stamp(a, 7)
    P = lambda r: f'v[{r}:{r + 1}]'
    a(f's_mov_b32 s68, {f2u(-LOG2E)}\ns_waitcnt vmcnt(0)')
    stamp(a, 8)
    T0 = 60
    for n in range(4):
        for m in range(2):
            y, sacc = YA(n, m), SA(n, m)
            for dl in range(3):
                r = RX + 16 * dl + 4 * n + 2 * m
                for d in range(2):
                    a(f'v_lshlrev_b32 v{T0 + 2 * d}, 16, v{r + d}\nv_and_b32 v{T0 + 2 * d + 1}, 0xffff0000, v{r + d}')
                for d in (0, 2): a(f'v_pk_add_f32 {P(y + d)}, {P(y + d)}, {P(T0 + d)}')
            for d in (0, 2): a(f'v_pk_mul_f32 {P(T0 + d)}, {P(y + d)}, s[68:69] op_sel_hi:[1,0]')
            for r in range(4): a(f'v_exp_f32 v{T0 + r}, v{T0 + r}')
            for d in (0, 2): a(f'v_pk_add_f32 {P(T0 + d)}, {P(T0 + d)}, 1.0 op_sel_hi:[1,0]')
            for r in range(4): a(f'v_rcp_f32 v{T0 + r}, v{T0 + r}')
            for d in (0, 2): a(f'v_pk_mul_f32 {P(y + d)}, {P(y + d)}, {P(sacc + d)}')
            for d in (0, 2): a(f'v_pk_mul_f32 {P(y + d)}, {P(y + d)}, {P(T0 + d)}')
            q = 64 + 8 * m + 2 * n
            a(f'v_cvt_pk_bf16_f32 v{q}, v{y}, v{y + 1}\nv_cvt_pk_bf16_f32 v{q + 1}, v{y + 2}, v{y + 3}')
    for m in range(2):
        for pr in range(2):
            q = 64 + 8 * m + 4 * pr
            x = XR + 4 * (2 * m + pr)
            a(f'v_permlane16_swap_b32 v{q}, v{q + 2}\nv_permlane16_swap_b32 v{q + 1}, v{q + 3}')
            for d in range(4):
                a(f'v_lshlrev_b32 v{T0}, 16, v{q + d}\nv_and_b32 v{T0 + 1}, 0xffff0000, v{q + d}')
                a(f'v_lshlrev_b32 v{T0 + 2}, 16, v{x + d}\nv_and_b32 v{T0 + 3}, 0xffff0000, v{x + d}')
                a(f'v_pk_add_f32 {P(T0)}, {P(T0)}, {P(T0 + 2)}\nv_cvt_pk_bf16_f32 v{x + d}, v{T0}, v{T0 + 1}')
            a(f'buffer_store_dwordx4 v[{x}:{x + 3}], v{31 + m}, s[44:47], s56 offen offset:{64 * pr}')
    stamp(a, 9)
    stamp_out(a, 2, 10)
    a('L2_end:\ns_endpgm')
    return kernel_header(name) + pad_hazards(a.L), kernel_desc(name, 512, 256)


def build():
    ks = [('ln_kernel', k0, 16384), ('proj_kernel', k1, K1_LDS), ('down_kernel', k2, K2_LDS)]
    head = [f'; @launch kernel={n} grid=(256,1,1) block=(256,1,1) lds={l}' for n, _, l in ks]
    head.append('.amdgcn_target "amdgcn-amd-amdhsa--gfx950"')
    body, desc = [], ['.section .rodata,"a"']
    for n, f, _ in ks:
        b, d = f(n)
        body += b; desc += ['.p2align 6'] + d
    return '\n'.join(head + body + desc) + '\n'


if __name__ == '__main__':
    out = sys.argv[1] if len(sys.argv) > 1 else f'cdna_kernels/{BASE}.s'
    OPT.update(sys.argv[2:])
    open(out, 'w').write(build())
```

```python
import gen1
from asmlib import *
def probe(name, argoff, n, size, base=0):
    a = Asm()
    a('s_cmp_ge_u32 s2, 256\ns_cbranch_scc1 LP_end')
    if n:
        a(f's_load_dwordx2 s[4:5], s[0:1], {argoff}\ns_waitcnt lgkmcnt(0)')
        gen1.srd(a, 8, 's4', 's5', size, base)
        a('s_lshl_b32 s3, s2, 14\nv_lshlrev_b32 v1, 2, v0\nv_add_u32 v1, s3, v1')
        for i in range(n):
            a('buffer_load_dword v2, v1, s[8:11], 0 offen\ns_waitcnt vmcnt(0)\nv_and_b32 v2, 0, v2\nv_add_u32 v1, 256, v1\nv_add_u32 v1, v1, v2')
    a('LP_end:\ns_endpgm')
    return kernel_header(name) + pad_hazards(a.L), kernel_desc(name, 16, 16, 32)
def make(fn, *args):
    s = gen1.build()
    b, d = probe('probe_kernel', *args)
    s = '; @launch kernel=probe_kernel grid=(256,1,1) block=(64,1,1) lds=0\n' + s
    i = s.index('.section .rodata')
    s = s[:i] + '\n'.join(b) + '\n' + s[i:] + '.p2align 6\n' + '\n'.join(d) + '\n'
    open(fn, 'w').write(s)
make('p_empty.s', 32, 0, 0)
make('p_bx.s', 32, 40, 4 << 20)
make('p_ws_hi.s', 80, 40, 4 << 20, 250 << 20)
make('p_ws_mid.s', 80, 40, 4 << 20, 100 << 20)
make('p_out.s', 64, 40, 4 << 20)
```

```python
import gen1
from asmlib import *
def probe(name, argoff, n, size, base=0):
    a = Asm()
    a('s_cmp_ge_u32 s2, 256\ns_cbranch_scc1 LP_end')
    if n:
        a(f's_load_dwordx2 s[4:5], s[0:1], {argoff}\ns_waitcnt lgkmcnt(0)')
        gen1.srd(a, 8, 's4', 's5', size, base)
        a('s_lshl_b32 s3, s2, 14\nv_lshlrev_b32 v1, 2, v0\nv_add_u32 v1, s3, v1')
        for i in range(n):
            a('buffer_load_dword v2, v1, s[8:11], 0 offen\ns_waitcnt vmcnt(0)\nv_and_b32 v2, 0, v2\nv_add_u32 v1, 256, v1\nv_add_u32 v1, v1, v2')
    a('LP_end:\ns_endpgm')
    return kernel_header(name) + pad_hazards(a.L), kernel_desc(name, 16, 16, 32)
def make(fn, *args):
    s = gen1.build()
    b, d = probe('probe_kernel', *args)
    s = '; @launch kernel=probe_kernel grid=(256,1,1) block=(64,1,1) lds=0\n' + s
    i = s.index('.section .rodata')
    s = s[:i] + '\n'.join(b) + '\n' + s[i:] + '.p2align 6\n' + '\n'.join(d) + '\n'
    open(fn, 'w').write(s)
make('p_empty.s', 32, 0, 0)
make('p_bx.s', 32, 40, 4 << 20)
make('p_ws_hi.s', 80, 40, 4 << 20, 250 << 20)
make('p_ws_mid.s', 80, 40, 4 << 20, 100 << 20)
make('p_out.s', 64, 40, 4 << 20)
def probe(name, mbytes):
    a = Asm()
    a('s_cmp_ge_u32 s2, 256\ns_cbranch_scc1 LP_end')
    a('s_load_dwordx2 s[4:5], s[0:1], 80\ns_waitcnt lgkmcnt(0)')
    gen1.srd(a, 8, 's4', 's5', mbytes << 20, 128 << 20)
    a(f's_lshl_b32 s3, s2, 13\nv_lshlrev_b32 v1, 7, v0\nv_add_u32 v1, s3, v1\ns_mov_b32 s12, 0\nLP_loop:')
    a(f'buffer_load_dword v2, v1, s[8:11], s12 offen\ns_add_u32 s12, s12, 0x200000\ns_waitcnt vmcnt(3)\ns_cmp_lt_u32 s12, {mbytes << 20}\ns_cbranch_scc1 LP_loop\ns_waitcnt vmcnt(0)')
    a('LP_end:\ns_endpgm')
    return kernel_header(name) + pad_hazards(a.L), kernel_desc(name, 16, 16, 32)
make('p_stream64.s', 64)
```
